```python
import torch

def _softmax(x, axis=-1):
    return torch.softmax(x, dim=axis)
def _gelu(x):
    return torch.nn.functional.gelu(x, approximate="tanh")
def _silu(x):
    return torch.nn.functional.silu(x)
def _sigmoid(x):
    return torch.sigmoid(x)
def _layernorm(x, axis=-1, eps=1e-5):
    m = x.mean(dim=axis, keepdim=True)
    v = x.var(dim=axis, keepdim=True, unbiased=False)
    return (x - m) / torch.sqrt(v + eps)
def _scatter_add(tgt, idx, src, axis=0):
    return tgt.clone().index_add_(axis, idx, src)
def _segment_sum(src, seg, n):
    out = torch.zeros((n,) + src.shape[1:], dtype=src.dtype)
    return out.index_add_(0, seg, src)
def _pad(x, pw):
    flat = tuple(v for pair in reversed(pw) for v in pair)
    return torch.nn.functional.pad(x, flat)

kernel_name = 'standalone__graph_attention_gat__graph'

def setup_inputs():

    _w = (lambda a: (lambda t: t.to(torch.bfloat16) if t.is_floating_point() else t)(torch.as_tensor(a)))
    N, deg, D = 10000, 16, 256
    H = 4
    E = N * deg
    return {
        "x": _w((lambda *s: torch.randn(*s, dtype=torch.bfloat16) * 0.4)(N, D) * 0.1),
        "src": _w((lambda lo, hi, *s: torch.randint(lo, hi, s))(0, N, E).to(torch.int64)),
        "dst": _w((lambda lo, hi, *s: torch.randint(lo, hi, s))(0, N, E).to(torch.int64)),
        "w": _w((lambda *s: torch.randn(*s, dtype=torch.bfloat16) * 1.6)(H, D, D) * (1.0 / D ** 0.5)),
        "a_src": _w((lambda *s: torch.randn(*s, dtype=torch.bfloat16) * 1.6)(H, D) * 0.1),
        "a_dst": _w((lambda *s: torch.randn(*s, dtype=torch.bfloat16) * 1.6)(H, D) * 0.1),
    }

def reference(x, src, dst, w, a_src, a_dst):
    N, D = x.shape
    H = w.shape[0]
    h = torch.einsum('nd,hdf->nhf', x, w)
    hs = h[src]
    hd = h[dst]
    e = torch.einsum('ehf,hf->eh', hs, a_src) + torch.einsum('ehf,hf->eh', hd, a_dst)
    e = torch.where(e > 0, e, 0.2 * e)
    exp_e = torch.exp(e)
    denom = _segment_sum(exp_e, dst, N) + 1e-9
    alpha = exp_e / denom[dst]
    out = _segment_sum(alpha[:, :, None] * hs, dst, N)
    return out.mean(1)
```

```python
import sys

OUT = []
def E(s=""):
    OUT.append(s)
def I(s):
    OUT.append("    " + s)
def L(s):
    OUT.append(s + ":")

N = 10000
NE = 160000
NCHUNK = 64
EPC = 2500
NT = 250
CELLS_BYTES = NCHUNK * NT * 128
WP_OFF = 0x200000
VT_OFF = 0x280000
WS_END = 0x281000
MARK = 0xFFFFFFF7

L_CNT = 0
L_LIST = 1024
L_STG = 17408
BUFB = 16896
L_TOTAL = L_STG + 8 * BUFB
L_AGG = L_STG
AGG_STRIDE = 2080

HEADER = open('standalone__graph_attention_gat__graph.s.ref').read().split('\n')
for ln in HEADER:
    if ln.startswith('; @launch') or ln.startswith('; Override') or ln.startswith('; grid=ceil'):
        continue
    if not ln.startswith(';'):
        break
    E(ln)
E("; @launch kernel=gat_prep_kernel grid=(160,1,1) block=(512,1,1) lds=34816")
E("; @launch kernel=standalone__graph_attention_gat__graph_kernel grid=(250,1,1) block=(256,1,1) lds=%d" % L_TOTAL)
E('.amdgcn_target "amdgcn-amd-amdhsa--gfx950"')
E(".text")

def srd(d, b, nbytes):
    I(f"s_mov_b32 s{d}, s{b}")
    I(f"s_and_b32 s{d+1}, s{b+1}, 0xffff")
    I(f"s_mov_b32 s{d+2}, {nbytes}")
    I(f"s_mov_b32 s{d+3}, 0x00020000")

E(".globl gat_prep_kernel")
E(".p2align 8")
E(".type gat_prep_kernel,@function")
L("gat_prep_kernel")
I("s_cmp_ge_u32 s2, 160")
I("s_cbranch_scc1 K1_END")
I("s_load_dwordx4 s[4:7], s[0:1], 8")
I("s_load_dwordx4 s[8:11], s[0:1], 24")
I("s_load_dwordx2 s[12:13], s[0:1], 40")
I("s_load_dwordx2 s[14:15], s[0:1], 64")
I("s_cmp_ge_u32 s2, 128")
I("s_cbranch_scc1 K1_V")
I("s_cmp_ge_u32 s2, 64")
I("s_cbranch_scc1 K1_REPACK")
I("v_lshlrev_b32 v1, 4, v0")
for r in range(2, 6):
    I(f"v_mov_b32 v{r}, -1")
for k in range(4):
    I(f"ds_write_b128 v1, v[2:5] offset:{k*8192}")
I("v_lshlrev_b32 v6, 2, v0")
I("v_mov_b32 v7, 0")
I("ds_write_b32 v6, v7 offset:32768")
I("s_waitcnt lgkmcnt(0)")
srd(16, 4, NE * 4)
srd(20, 6, NE * 4)
srd(24, 14, CELLS_BYTES)
I(f"s_mul_i32 s28, s2, {EPC*4}")
for j in range(1, 5):
    I(f"s_add_u32 s{28+j}, s28, {j*2000}")
I("v_cmp_gt_u32 vcc, 500, v0")
I("s_and_saveexec_b64 s[34:35], vcc")
for j in range(5):
    I(f"buffer_load_dword v{10+j}, v6, s[20:23], s{28+j} offen")
for j in range(5):
    I(f"buffer_load_dword v{15+j}, v6, s[16:19], s{28+j} offen")
I("v_mov_b32 v8, 1")
I(f"v_mov_b32 v9, {32768+2044}")
I("s_barrier")
I("s_waitcnt vmcnt(0)")
for j in range(5):
    vD, vS = 10 + j, 15 + j
    vq, vr, vt, vw, vb = 20, 21, 30 + j, 22, 23
    I(f"v_mul_u32_u24 v{vq}, 52429, v{vD}")
    I(f"v_lshrrev_b32 v{vq}, 19, v{vq}")
    I(f"v_mad_i32_i24 v{vr}, v{vq}, -10, v{vD}")
    I(f"v_lshrrev_b32 v{vt}, 2, v{vq}")
    I(f"v_and_b32 v{vw}, 3, v{vq}")
    I(f"v_lshrrev_b32 v{vb}, 2, v{vr}")
    I(f"v_mad_u32_u24 v{vb}, v{vw}, 3, v{vb}")
    I(f"v_and_b32 v{vr}, 3, v{vr}")
    I(f"v_lshl_or_b32 v{vr}, v{vb}, 3, v{vr}")
    I(f"v_lshl_or_b32 v{vS}, v{vS}, 9, v{vr}")
    I(f"v_lshlrev_b32 v24, 2, v{vt}")
    I(f"ds_add_rtn_u32 v{35+j}, v24, v8 offset:32768")
I("s_waitcnt lgkmcnt(0)")
for j in range(5):
    vt, vrank = 30 + j, 35 + j
    I(f"v_lshlrev_b32 v{vt}, 7, v{vt}")
    I(f"v_lshl_add_u32 v{vt}, v{vrank}, 2, v{vt}")
    I(f"v_cmp_gt_u32 vcc, 32, v{vrank}")
    I("s_nop 1")
    I(f"v_cndmask_b32 v{vt}, v9, v{vt}, vcc")
    I(f"ds_write_b32 v{vt}, v{15+j}")
I("s_mov_b64 exec, s[34:35]")
I("s_waitcnt lgkmcnt(0)")
I("s_barrier")
I("v_lshrrev_b32 v2, 3, v0")
I("v_lshlrev_b32 v2, 2, v2")
for k in range(4):
    I(f"ds_read_b128 v[{10+4*k}:{13+4*k}], v1 offset:{k*8192}")
    I(f"ds_read_b32 v{30+k}, v2 offset:{32768+k*256}")
I("v_and_b32 v3, 7, v0")
I("v_cmp_eq_u32 s[36:37], 7, v3")
I(f"v_mov_b32 v4, {MARK}")
I(f"s_mul_i32 s28, s2, {NT*128}")
I("s_waitcnt lgkmcnt(0)")
for k in range(4):
    I(f"v_cmp_lt_u32 vcc, 32, v{30+k}")
    I("s_and_b64 vcc, vcc, s[36:37]")
    I("s_nop 1")
    I(f"v_cndmask_b32 v{13+4*k}, v{13+4*k}, v4, vcc")
for k in range(3):
    I(f"v_add_u32 v{5+k}, {k*8192}, v1")
I(f"v_add_u32 v8, {3*8192}, v1")
for k in range(3):
    I(f"buffer_store_dwordx4 v[{10+4*k}:{13+4*k}], v{5+k}, s[24:27], s28 offen")
I("v_cmp_gt_u32 vcc, 464, v0")
I("s_and_saveexec_b64 s[34:35], vcc")
I("s_cbranch_execz K1_END")
I("buffer_store_dwordx4 v[22:25], v8, s[24:27], s28 offen")
I("s_branch K1_END")
L("K1_REPACK")
I("v_lshrrev_b32 v1, 6, v0")
I("v_and_b32 v2, 63, v0")
I("v_readfirstlane_b32 s28, v1")
I("s_waitcnt lgkmcnt(0)")
srd(16, 8, 4 * 256 * 256 * 2)
srd(24, 14, WS_END)
I("s_sub_u32 s29, s2, 64")
I("s_lshl_b32 s29, s29, 3")
I("s_add_u32 s29, s29, s28")
I("s_lshr_b32 s30, s29, 7")
I("s_lshr_b32 s31, s29, 2")
I("s_and_b32 s31, s31, 31")
I("s_and_b32 s32, s29, 3")
I("s_lshl_b32 s33, s30, 17")
I("s_lshl_b32 s34, s31, 12")
I("s_add_u32 s33, s33, s34")
I("s_lshl_b32 s34, s32, 7")
I("s_add_u32 s33, s33, s34")
I("v_lshlrev_b32 v3, 1, v2")
for i in range(8):
    I(f"buffer_load_ushort v{10+i}, v3, s[16:19], s33 offen offset:{i*512}")
I("s_lshl_b32 s34, s32, 5")
I("s_lshl_b32 s35, s30, 3")
I("s_add_u32 s34, s34, s35")
I("s_lshr_b32 s35, s31, 2")
I("s_add_u32 s34, s34, s35")
I("s_lshl_b32 s34, s34, 12")
I("s_and_b32 s35, s31, 3")
I("s_lshl_b32 s35, s35, 8")
I("s_add_u32 s34, s34, s35")
I(f"s_add_u32 s34, s34, {WP_OFF}")
I("v_bfe_u32 v4, v2, 2, 2")
I("v_lshlrev_b32 v4, 10, v4")
I("v_lshrrev_b32 v5, 4, v2")
I("v_lshl_or_b32 v4, v5, 6, v4")
I("v_and_b32 v5, 3, v2")
I("v_lshl_or_b32 v4, v5, 4, v4")
I("s_waitcnt vmcnt(0)")
for i in range(4):
    I(f"v_lshl_or_b32 v{20+i}, v{11+2*i}, 16, v{10+2*i}")
I("buffer_store_dwordx4 v[20:23], v4, s[24:27], s34 offen")
I("s_branch K1_END")
L("K1_V")
I("v_lshrrev_b32 v1, 4, v0")
I("v_and_b32 v2, 15, v0")
I("s_sub_u32 s29, s2, 128")
I("s_lshl_b32 s29, s29, 5")
I("v_add_u32 v1, s29, v1")
I("v_lshlrev_b32 v3, 9, v1")
I("v_lshl_add_u32 v3, v2, 5, v3")
I("v_lshrrev_b32 v4, 8, v1")
I("v_lshlrev_b32 v4, 9, v4")
I("v_lshl_add_u32 v4, v2, 5, v4")
I("s_waitcnt lgkmcnt(0)")
srd(16, 8, 4 * 256 * 256 * 2)
srd(20, 10, 2048)
srd(28, 12, 2048)
srd(24, 14, WS_END)
I("buffer_load_dwordx4 v[8:11], v3, s[16:19], 0 offen")
I("buffer_load_dwordx4 v[12:15], v3, s[16:19], 0 offen offset:16")
I("buffer_load_dwordx4 v[16:19], v4, s[20:23], 0 offen")
I("buffer_load_dwordx4 v[20:23], v4, s[20:23], 0 offen offset:16")
I("buffer_load_dwordx4 v[24:27], v4, s[28:31], 0 offen")
I("buffer_load_dwordx4 v[28:31], v4, s[28:31], 0 offen offset:16")
I("v_mov_b32 v32, 0")
I("v_mov_b32 v33, 0")
I("s_waitcnt vmcnt(0)")
for i in range(8):
    I(f"v_lshlrev_b32 v34, 16, v{8+i}")
    I(f"v_and_b32 v35, 0xffff0000, v{8+i}")
    I(f"v_lshlrev_b32 v36, 16, v{16+i}")
    I(f"v_and_b32 v37, 0xffff0000, v{16+i}")
    I(f"v_lshlrev_b32 v38, 16, v{24+i}")
    I(f"v_and_b32 v39, 0xffff0000, v{24+i}")
    I("v_fmac_f32 v32, v34, v36")
    I("v_fmac_f32 v33, v34, v38")
    I("v_fmac_f32 v32, v35, v37")
    I("v_fmac_f32 v33, v35, v39")
for mod in ["quad_perm:[1,0,3,2]", "quad_perm:[2,3,0,1]", "row_half_mirror", "row_mirror"]:
    I("s_nop 1")
    I(f"v_add_f32_dpp v32, v32, v32 {mod} row_mask:0xf bank_mask:0xf")
    I(f"v_add_f32_dpp v33, v33, v33 {mod} row_mask:0xf bank_mask:0xf")
I("v_cmp_eq_u32 vcc, 0, v2")
I("s_nop 1")
I("v_cndmask_b32 v32, v33, v32, vcc")
I("v_mul_f32 v32, 0x3fb8aa3b, v32")
I("v_cvt_pk_bf16_f32 v32, v32, v32")
I("v_lshlrev_b32 v5, 1, v1")
I("v_lshl_add_u32 v5, v2, 11, v5")
I(f"v_add_u32 v5, {VT_OFF}, v5")
I("v_cmp_gt_u32 vcc, 2, v2")
I("s_and_saveexec_b64 s[34:35], vcc")
I("s_cbranch_execz K1_END")
I("buffer_store_short v32, v5, s[24:27], 0 offen")
L("K1_END")
I("s_endpgm")

KN = "standalone__graph_attention_gat__graph_kernel"
E(f".globl {KN}")
E(".p2align 8")
E(f".type {KN},@function")

class Alloc:
    def __init__(self, start, limit):
        self.n = start
        self.limit = limit
    def __call__(self, cnt, align=1):
        self.n = (self.n + align - 1) // align * align
        r = self.n
        self.n += cnt
        assert self.n <= self.limit, ("reg overflow", self.n)
        return r

va = Alloc(1, 256)
vLane = va(1); vC16 = va(1); vG = va(1)
vAS0 = va(1); vAT0 = va(1); vAR0 = va(1); vAD0 = va(1); vLoff = va(1)
vAS = va(1); vAT = va(1); vAR = va(1); vAD = va(1)
vKEY = va(1); vSD1 = va(1); vSD2 = va(1); vWoff = va(1)
vT0 = va(1); vT1 = va(1); vT2 = va(1)
vSDq = va(4, 4)
vP = va(4, 4)
vDEN = va(4, 4)
vACC = va(64, 4)
vH0 = va(32, 4)
vH1 = va(32, 4)
vPOOL = va(64, 4)
vDA = va(16, 4)
vREC = va(8, 4)
vS = va(8, 4)
assert vDA == vPOOL + 64 and vREC == vDA + 16 and vS == vREC + 8
NV_ARCH = va.n
aVS = 0
aONE = 32
aW = 48
NKA = 13
NKV = 6

sX = 16; sWS = 20; sOUT = 24; sSRC = 28; sDST = 32
sT = 2
s_wv = 36; s_lb = 37; s_n0 = 38; s_n1 = 39; s_n2 = 40
s_pl = 41; s_prem = 42; s_psub = 43; s_il = 44; s_irem = 45; s_isub = 46
s_pbuf = 47; s_ahead = 48; s_mode = 49; s_mask = 50; s_tmp = 51; s_tmp2 = 52
s_node0 = 53; s_nn = 54; s_keyhi = 55; s_cnt = 56; s_base = 57; s_tail = 58; s_bufx = 59
sM = 64
s_sv = 80
s_wo = 82

def v4(r): return f"v[{r}:{r+3}]"
def a4(r): return f"a[{r}:{r+3}]"

L(KN)
I(f"s_cmp_ge_u32 s2, {NT}")
I("s_cbranch_scc1 K3_END")
I("s_load_dwordx4 s[4:7], s[0:1], 0")
I("s_load_dwordx2 s[8:9], s[0:1], 16")
I("s_load_dwordx2 s[10:11], s[0:1], 48")
I("s_load_dwordx2 s[12:13], s[0:1], 64")
I(f"v_and_b32 v{vLane}, 63, v0")
I(f"v_lshrrev_b32 v{vT0}, 6, v0")
I(f"v_and_b32 v{vC16}, 15, v0")
I(f"v_readfirstlane_b32 s{s_wv}, v{vT0}")
I(f"v_bfe_u32 v{vG}, v0, 4, 2")
I(f"v_lshlrev_b32 v{vT1}, 4, v0")
for r in range(4):
    I(f"v_mov_b32 v{vP+r}, -1")
for k in range(4):
    I(f"ds_write_b128 v{vT1}, {v4(vP)} offset:{L_LIST + k*4096}")
I(f"v_lshlrev_b32 v{vT2}, 2, v0")
I(f"v_mov_b32 v{vT0}, 0")
I(f"ds_write_b32 v{vT2}, v{vT0} offset:{L_CNT}")
I("s_waitcnt lgkmcnt(0)")
srd(sX, 4, N * 512)
srd(sWS, 12, WS_END)
srd(sOUT, 10, N * 512)
srd(sSRC, 6, NE * 4)
srd(sDST, 8, NE * 4)
vC = vDA
I(f"v_lshrrev_b32 v{vT0}, 2, v0")
I(f"v_mul_u32_u24 v{vT0}, {NT*128}, v{vT0}")
I(f"v_and_b32 v{vT1}, 3, v0")
I(f"v_lshl_add_u32 v{vT0}, v{vT1}, 5, v{vT0}")
I(f"s_lshl_b32 s{s_tmp}, s2, 7")
I(f"buffer_load_dwordx4 {v4(vC)}, v{vT0}, s[{sWS}:{sWS+3}], s{s_tmp} offen")
I(f"buffer_load_dwordx4 {v4(vC+4)}, v{vT0}, s[{sWS}:{sWS+3}], s{s_tmp} offen offset:16")
I(f"s_mul_i32 s{s_node0}, s2, 40")
I(f"s_mul_i32 s{s_tmp}, s{s_wv}, 10")
I(f"s_add_u32 s{s_node0}, s{s_node0}, s{s_tmp}")
I(f"s_lshl_b32 s{s_tmp}, s{s_node0}, 9")
I(f"v_lshlrev_b32 v{vT0}, 9, v{vC16}")
I(f"v_lshl_add_u32 v{vT0}, v{vG}, 4, v{vT0}")
for ks in range(8):
    I(f"buffer_load_dwordx4 {v4(vPOOL+4*ks)}, v{vT0}, s[{sX}:{sX+3}], s{s_tmp} offen offset:{ks*64}")
I(f"v_and_b32 v{vT0}, 3, v{vC16}")
I(f"v_lshlrev_b32 v{vT0}, 9, v{vT0}")
I(f"v_lshl_add_u32 v{vT0}, v{vG}, 4, v{vT0}")
I(f"s_mov_b32 s{s_tmp}, {VT_OFF}")
for ks in range(8):
    I(f"buffer_load_dwordx4 {v4(vPOOL+32+4*ks)}, v{vT0}, s[{sWS}:{sWS+3}], s{s_tmp} offen offset:{2048+ks*64}")
for ks in range(8):
    I(f"buffer_load_dwordx4 {a4(aVS+4*ks)}, v{vT0}, s[{sWS}:{sWS+3}], s{s_tmp} offen offset:{ks*64}")
I(f"v_mul_u32_u24 v{vAS0}, 1056, v{vC16}")
I(f"v_lshl_add_u32 v{vAS0}, v{vG}, 4, v{vAS0}")
I(f"v_lshrrev_b32 v{vT0}, 2, v{vLane}")
I(f"v_mul_u32_u24 v{vAT0}, 1056, v{vT0}")
I(f"v_and_b32 v{vT0}, 3, v{vLane}")
I(f"v_lshl_add_u32 v{vAT0}, v{vT0}, 3, v{vAT0}")
I(f"v_lshlrev_b32 v{vAR0}, 4, v{vG}")
I(f"v_lshrrev_b32 v{vT0}, 5, v{vLane}")
I(f"v_lshlrev_b32 v{vAD0}, 6, v{vT0}")
I(f"v_and_b32 v{vT0}, 31, v{vLane}")
I(f"v_lshlrev_b32 v{vLoff}, 4, v{vT0}")
I(f"v_lshlrev_b32 v{vWoff}, 4, v{vLane}")
I(f"s_lshl_b32 s{s_tmp}, s{s_wv}, 17")
I(f"s_add_u32 s{s_wo}, s{s_tmp}, {WP_OFF}")
I(f"s_mov_b32 s{s_mask}, 0xfffffe00")
I(f"v_mov_b32 v{vT0}, 0x3f803f80")
for r in range(4):
    I(f"v_accvgpr_write_b32 a{aONE+r}, v{vT0}")
for r in range(64):
    I(f"v_mov_b32 v{vACC+r}, 0")
for r in range(4):
    I(f"v_mov_b32 v{vDEN+r}, 0")
I("s_barrier")

def wload(ks, dst_is_a, base):
    I(f"s_add_u32 s{s_tmp}, s{s_wo}, {ks*4096}")
    for j in range(4):
        d = a4(base + 4*j) if dst_is_a else v4(base + 4*j)
        I(f"buffer_load_dwordx4 {d}, v{vWoff}, s[{sWS}:{sWS+3}], s{s_tmp} offen offset:{j*1024}")

for ks in range(7):
    wload(ks, True, aW + 16*ks)
I("s_waitcnt vmcnt(52)")
vA8 = vH0
vP8 = vH0 + 8
I(f"v_mov_b32 v{vT0}, 1")
for k in range(8):
    I(f"v_cmp_ne_u32 s[{sM+2*k}:{sM+2*k+1}], -1, v{vC+k}")
    I(f"v_bfe_u32 v{vA8+k}, v{vC+k}, 3, 4")
    I(f"v_lshlrev_b32 v{vA8+k}, 2, v{vA8+k}")
for k in range(8):
    I(f"s_mov_b64 exec, s[{sM+2*k}:{sM+2*k+1}]")
    I(f"ds_add_rtn_u32 v{vP8+k}, v{vA8+k}, v{vT0} offset:{L_CNT}")
I("s_mov_b64 exec, -1")
I("s_waitcnt lgkmcnt(0)")
for k in range(8):
    I(f"v_min_u32 v{vP8+k}, 255, v{vP8+k}")
    I(f"v_lshlrev_b32 v{vP8+k}, 2, v{vP8+k}")
    I(f"v_lshl_add_u32 v{vP8+k}, v{vA8+k}, 8, v{vP8+k}")
for k in range(8):
    I(f"s_mov_b64 exec, s[{sM+2*k}:{sM+2*k+1}]")
    I(f"ds_write_b32 v{vP8+k}, v{vC+k} offset:{L_LIST}")
I("s_mov_b64 exec, -1")
for ks in range(7, NKA):
    wload(ks, True, aW + 16*ks)
I("s_waitcnt vmcnt(60)")
for ks in range(8):
    c = "0" if ks == 0 else v4(vS)
    I(f"v_mfma_f32_16x16x32_bf16 {v4(vS)}, {v4(vPOOL+4*ks)}, {v4(vPOOL+32+4*ks)}, {c}")
I(f"v_lshrrev_b32 v{vT0}, 2, v{vC16}")
I(f"v_cmp_eq_u32 s[{sM}:{sM+1}], 1, v{vT0}")
I(f"v_cmp_eq_u32 s[{sM+2}:{sM+3}], 2, v{vT0}")
I(f"v_cmp_eq_u32 s[{sM+4}:{sM+5}], 3, v{vT0}")
I(f"v_lshlrev_b32 v{vT1}, 2, v{vC16}")
I(f"v_add_u32 v{vT2}, 64, v{vT1}")
I(f"v_add_u32 v{vAS}, 128, v{vT1}")
I("s_nop 7")
I(f"v_cndmask_b32 v{vS}, v{vS}, v{vS+1}, s[{sM}:{sM+1}]")
I(f"v_cndmask_b32 v{vS}, v{vS}, v{vS+2}, s[{sM+2}:{sM+3}]")
I(f"v_cndmask_b32 v{vS}, v{vS}, v{vS+3}, s[{sM+4}:{sM+5}]")
I(f"ds_bpermute_b32 v{vSDq}, v{vT1}, v{vS}")
I(f"ds_bpermute_b32 v{vSD1}, v{vT2}, v{vS}")
I(f"ds_bpermute_b32 v{vSD2}, v{vAS}, v{vS}")
I(f"s_mul_i32 s{s_tmp}, s{s_wv}, 24")
I(f"v_add_u32 v{vKEY}, s{s_tmp}, v{vT0}")
I(f"s_mul_i32 s{s_lb}, s{s_wv}, 3072")
I(f"s_add_u32 s{s_lb}, s{s_lb}, {L_LIST}")
I(f"s_mul_i32 s{s_pbuf}, s{s_wv}, {2*BUFB}")
I(f"s_add_u32 s{s_pbuf}, s{s_pbuf}, {L_STG}")
I(f"s_add_u32 s{s_tmp}, s{s_pbuf}, {BUFB}")
I(f"s_xor_b32 s{s_bufx}, s{s_pbuf}, s{s_tmp}")
I("s_waitcnt lgkmcnt(0)")
for r in range(1, 4):
    I(f"v_mov_b32 v{vSDq+r}, v{vSDq}")
I("s_barrier")
I(f"v_lshlrev_b32 v{vT1}, 2, v{vC16}")
I(f"ds_read_b32 v{vT0}, v{vT1} offset:{L_CNT}")
I(f"v_mov_b32 v{vT2}, 256")
I(f"v_cmp_eq_u32 vcc, 14, v{vC16}")
I("s_nop 1")
I(f"v_cndmask_b32 v{vT2}, v{vT2}, 0, vcc")
I(f"v_cmp_gt_u32 s[{sM}:{sM+1}], 12, v{vC16}")
I(f"s_or_b64 s[{sM}:{sM+1}], s[{sM}:{sM+1}], vcc")
I(f"s_mul_i32 s{s_tmp}, s{s_wv}, 3")
I(f"s_add_u32 s{s_tmp2}, s{s_tmp}, 1")
I(f"s_add_u32 s{s_cnt}, s{s_tmp}, 2")
I(f"s_mov_b32 s{s_psub}, 0")
I(f"s_mov_b32 s{s_mode}, 0")
I("s_waitcnt lgkmcnt(0)")
I(f"v_cmp_gt_u32 vcc, v{vT0}, v{vT2}")
I(f"v_readlane_b32 s{s_n0}, v{vT0}, s{s_tmp}")
I(f"v_readlane_b32 s{s_n1}, v{vT0}, s{s_tmp2}")
I(f"v_readlane_b32 s{s_n2}, v{vT0}, s{s_cnt}")
I(f"s_and_b64 vcc, vcc, s[{sM}:{sM+1}]")
I("s_cbranch_vccnz K3_SLOW")
for s in (s_n0, s_n1, s_n2):
    I(f"s_add_u32 s{s}, s{s}, 31")
    I(f"s_lshr_b32 s{s}, s{s}, 5")
    I(f"s_max_u32 s{s}, s{s}, 1")
I(f"s_mov_b32 s{s_pl}, s{s_lb}")
I(f"s_mov_b32 s{s_prem}, s{s_n0}")
I(f"s_mov_b32 s{s_il}, s{s_lb}")
I(f"s_mov_b32 s{s_irem}, s{s_n0}")
I(f"s_mov_b32 s{s_isub}, 0")

_uid = [0]
def uid(p):
    _uid[0] += 1
    return f"{p}_{_uid[0]}"

def read_da(s_list):
    I(f"v_add_u32 v{vAD}, s{s_list}, v{vAD0}")
    for q in range(4):
        I(f"ds_read_b128 {v4(vDA+4*q)}, v{vAD} offset:{q*16}")

def calc_da():
    for i in range(16):
        I(f"v_and_or_b32 v{vDA+i}, v{vDA+i}, s{s_mask}, v{vLoff}")

def issue(s_buf):
    I(f"s_mov_b32 m0, s{s_buf}")
    I("s_nop 0")
    for i in range(16):
        I(f"buffer_load_dwordx4 v{vDA+i}, s[{sX}:{sX+3}], 0 offen lds")
        if i < 15:
            I("s_add_u32 m0, m0, 1056")
            I("s_nop 0")

def advance_issue():
    d = uid("ADV")
    I(f"s_add_u32 s{s_il}, s{s_il}, 128")
    I(f"s_sub_u32 s{s_irem}, s{s_irem}, 1")
    I(f"s_cmp_lg_u32 s{s_irem}, 0")
    I(f"s_cbranch_scc1 {d}")
    I(f"s_add_u32 s{s_isub}, s{s_isub}, 1")
    I(f"s_lshl_b32 s{s_il}, s{s_isub}, 10")
    I(f"s_add_u32 s{s_il}, s{s_il}, s{s_lb}")
    I(f"s_cmp_eq_u32 s{s_isub}, 1")
    I(f"s_cselect_b32 s{s_irem}, s{s_n1}, 0")
    I(f"s_cmp_eq_u32 s{s_isub}, 2")
    I(f"s_cselect_b32 s{s_irem}, s{s_n2}, s{s_irem}")
    L(d)

def proc1(s_list_next):
    I(f"v_add_u32 v{vAS}, s{s_pbuf}, v{vAS0}")
    I(f"v_add_u32 v{vAT}, s{s_pbuf}, v{vAT0}")
    I(f"v_add_u32 v{vAR}, s{s_pl}, v{vAR0}")
    for ks in range(8):
        for b in range(2):
            I(f"ds_read_b128 {v4(vPOOL+4*(2*ks+b))}, v{vAS} offset:{b*512+ks*64}")
    I(f"ds_read_b128 {v4(vREC)}, v{vAR}")
    I(f"ds_read_b128 {v4(vREC+4)}, v{vAR} offset:64")
    if s_list_next is not None:
        read_da(s_list_next)
        I("s_waitcnt lgkmcnt(14)")
    else:
        I("s_waitcnt lgkmcnt(10)")
    for ks in range(8):
        if ks == 4:
            I("s_waitcnt lgkmcnt(15)")
        for b in range(2):
            q = 2*ks + b
            c = v4(vSDq) if ks == 0 else v4(vS+4*b)
            I(f"v_mfma_f32_16x16x32_bf16 {v4(vS+4*b)}, {v4(vPOOL+4*q)}, {a4(aVS+4*ks)}, {c}")
        for b in range(2):
            q = 2*ks + b
            I(f"ds_read_b64_tr_b16 v[{vPOOL+4*q}:{vPOOL+4*q+1}], v{vAT} offset:{q*32}")
            I(f"ds_read_b64_tr_b16 v[{vPOOL+4*q+2}:{vPOOL+4*q+3}], v{vAT} offset:{512+q*32}")
    for k in range(8):
        I(f"v_cmp_eq_u32_sdwa s[{sM+2*k}:{sM+2*k+1}], v{vREC+k}, v{vKEY} src0_sel:BYTE_0 src1_sel:DWORD")
    if s_list_next is not None:
        calc_da()
    else:
        I("s_nop 7")
    for k in range(8):
        I(f"v_mul_f32 v{vREC+k}, 0x3e4ccccd, v{vS+k}")
    for k in range(8):
        I(f"v_max_f32 v{vS+k}, v{vS+k}, v{vREC+k}")
    for k in range(8):
        I(f"v_exp_f32 v{vS+k}, v{vS+k}")
    for k in range(8):
        I(f"v_cndmask_b32 v{vS+k}, 0, v{vS+k}, s[{sM+2*k}:{sM+2*k+1}]")
    for k in range(4):
        I(f"v_cvt_pk_bf16_f32 v{vP+k}, v{vS+2*k}, v{vS+2*k+1}")
    I("s_waitcnt lgkmcnt(0)")

def proc2():
    I("s_nop 1")
    I(f"v_mfma_f32_16x16x32_bf16 {v4(vDEN)}, {a4(aONE)}, {v4(vP)}, {v4(vDEN)}")
    for j in range(16):
        I(f"v_mfma_f32_16x16x32_bf16 {v4(vACC+4*j)}, {v4(vPOOL+4*j)}, {v4(vP)}, {v4(vACC+4*j)}")

read_da(s_il)
I("s_waitcnt lgkmcnt(0)")
calc_da()
issue(s_pbuf)
advance_issue()
read_da(s_il)
I(f"s_xor_b32 s{s_tmp2}, s{s_pbuf}, s{s_bufx}")
I("s_waitcnt lgkmcnt(0)")
calc_da()
issue(s_tmp2)
advance_issue()
I(f"s_mov_b32 s{s_ahead}, 2")

L("K3_LOOP")
I(f"s_cmp_ge_u32 s{s_ahead}, 2")
I("s_cbranch_scc1 K3_W16")
I("s_waitcnt vmcnt(0)")
L("K3_W16")
I("s_waitcnt vmcnt(16)")
proc1(s_il)
I(f"s_cmp_eq_u32 s{s_irem}, 0")
I("s_cbranch_scc1 K3_NOISSUE")
issue(s_pbuf)
advance_issue()
I(f"s_add_u32 s{s_ahead}, s{s_ahead}, 1")
L("K3_NOISSUE")
I(f"s_sub_u32 s{s_ahead}, s{s_ahead}, 1")
proc2()
I(f"s_xor_b32 s{s_pbuf}, s{s_pbuf}, s{s_bufx}")
I(f"s_add_u32 s{s_pl}, s{s_pl}, 128")
I(f"s_sub_u32 s{s_prem}, s{s_prem}, 1")
I(f"s_cmp_lg_u32 s{s_prem}, 0")
I("s_cbranch_scc1 K3_LOOP")
L("K3_FIN")
I(f"s_cmp_eq_u32 s{s_psub}, 1")
I("s_cbranch_scc1 K3_F1")
I(f"s_cmp_eq_u32 s{s_psub}, 2")
I("s_cbranch_scc1 K3_F2")

def finalize(sub):
    I("s_nop 7")
    I("s_nop 1")
    I(f"v_add_f32 v{vT0}, 0x3089705f, v{vDEN}")
    I(f"v_rcp_f32 v{vT0}, v{vT0}")
    I("s_nop 0")
    I(f"v_mul_f32 v{vT0}, 0.25, v{vT0}")
    for r in range(64):
        I(f"v_mul_f32 v{vACC+r}, v{vACC+r}, v{vT0}")
    for j in range(16):
        if sub == 0:
            d = vH0 + 2*j
        elif sub == 1:
            d = vH1 + 2*j
        else:
            d = vACC + 4*j
        I(f"v_cvt_pk_bf16_f32 v{d}, v{vACC+4*j}, v{vACC+4*j+1}")
        I(f"v_cvt_pk_bf16_f32 v{d+1}, v{vACC+4*j+2}, v{vACC+4*j+3}")
    if sub < 2:
        for r in range(64):
            I(f"v_mov_b32 v{vACC+r}, 0")
        for r in range(4):
            I(f"v_mov_b32 v{vDEN+r}, 0")
        src = vSD1 if sub == 0 else vSD2
        for r in range(4):
            I(f"v_mov_b32 v{vSDq+r}, v{src}")
        I(f"v_add_u32 v{vKEY}, 8, v{vKEY}")
        I(f"s_mov_b32 s{s_psub}, {sub+1}")
        I(f"s_add_u32 s{s_pl}, s{s_lb}, {(sub+1)*1024}")
        I(f"s_mov_b32 s{s_prem}, s{s_n1 if sub == 0 else s_n2}")
        I(f"s_cmp_eq_u32 s{s_mode}, 0")
        I("s_cbranch_scc1 K3_LOOP")
        I("s_branch K3_SLOW_SUB")

L("K3_F0")
finalize(0)
L("K3_F1")
finalize(1)
L("K3_F2")
for i in range(NKV):
    wload(NKA + i, False, vPOOL + 16*i)
finalize(2)
I("s_barrier")
I(f"v_lshrrev_b32 v{vT0}, 2, v{vC16}")
I(f"s_mul_i32 s{s_tmp}, s{s_wv}, 10")
I(f"v_add_u32 v{vT1}, s{s_tmp}, v{vT0}")
I(f"v_mul_u32_u24 v{vT1}, {AGG_STRIDE}, v{vT1}")
I(f"v_and_b32 v{vT2}, 3, v{vC16}")
I(f"v_lshl_add_u32 v{vT1}, v{vT2}, 9, v{vT1}")
I(f"v_lshl_add_u32 v{vT1}, v{vG}, 3, v{vT1}")
I(f"v_add_u32 v{vT1}, {L_AGG}, v{vT1}")
for j in range(16):
    I(f"ds_write_b64 v{vT1}, v[{vH0+2*j}:{vH0+2*j+1}] offset:{j*32}")
for j in range(16):
    I(f"ds_write_b64 v{vT1}, v[{vH1+2*j}:{vH1+2*j+1}] offset:{4*AGG_STRIDE+j*32}")
I(f"v_cmp_gt_u32 vcc, 8, v{vC16}")
I("s_mov_b64 exec, vcc")
for j in range(16):
    I(f"ds_write_b64 v{vT1}, v[{vACC+4*j}:{vACC+4*j+1}] offset:{8*AGG_STRIDE+j*32}")
I("s_mov_b64 exec, -1")
I(f"v_mul_u32_u24 v{vAS}, {AGG_STRIDE}, v{vC16}")
I(f"v_lshl_add_u32 v{vAS}, v{vG}, 4, v{vAS}")
I(f"v_add_u32 v{vAS}, {L_AGG}, v{vAS}")
I(f"v_add_u32 v{vAT}, {32*AGG_STRIDE}, v{vAS}")
I("s_waitcnt lgkmcnt(0)")
I("s_barrier")
vO = vH0
vB = vACC
def bread(ks, slot):
    base = vB + 12*slot
    I(f"ds_read_b128 {v4(base)}, v{vAS} offset:{ks*64}")
    I(f"ds_read_b128 {v4(base+4)}, v{vAS} offset:{16*AGG_STRIDE+ks*64}")
    I(f"ds_read_b128 {v4(base+8)}, v{vAT} offset:{ks*64}")
bread(0, 0)
for ks in range(32):
    if ks + 1 < 32:
        bread(ks + 1, (ks + 1) & 1)
        I("s_waitcnt lgkmcnt(3)")
    else:
        I("s_waitcnt lgkmcnt(0)")
    if ks >= NKA:
        if ks < NKA + NKV:
            n = (4*NKV + 4*NKA) - 4*(ks - NKA + 1)
        else:
            n = (4*NKV + 4*NKA) - (4*NKV + 4*(ks - NKA - NKV + 1))
        I(f"s_waitcnt vmcnt({min(63, n)})")
    for j in range(4):
        if ks < NKA:
            w = a4(aW + 16*ks + 4*j)
        elif ks < NKA + NKV:
            w = v4(vPOOL + 16*(ks - NKA) + 4*j)
        else:
            w = a4(aW + 16*(ks - NKA - NKV) + 4*j)
        for G in range(3):
            o = vO + 16*G + 4*j
            c = "0" if ks == 0 else v4(o)
            I(f"v_mfma_f32_16x16x32_bf16 {v4(o)}, {w}, {v4(vB + 12*(ks&1) + 4*G)}, {c}")
    if ks < NKA and ks + NKA + NKV < 32:
        wload(ks + NKA + NKV, True, aW + 16*ks)
I(f"s_mul_i32 s{s_tmp}, s2, {40*512}")
I(f"s_lshl_b32 s{s_tmp2}, s{s_wv}, 7")
I(f"s_add_u32 s{s_tmp}, s{s_tmp}, s{s_tmp2}")
I(f"v_lshlrev_b32 v{vT0}, 9, v{vC16}")
I(f"v_lshl_add_u32 v{vT0}, v{vG}, 5, v{vT0}")
I(f"v_add_u32 v{vT1}, {16*512}, v{vT0}")
I(f"v_add_u32 v{vT2}, {32*512}, v{vT0}")
I("s_nop 7")
for G in range(3):
    pk = vACC + 8*G
    for j in range(4):
        o = vO + 16*G + 4*j
        I(f"v_cvt_pk_bf16_f32 v{pk+2*j}, v{o}, v{o+1}")
        I(f"v_cvt_pk_bf16_f32 v{pk+2*j+1}, v{o+2}, v{o+3}")
for G in range(3):
    pk = vACC + 8*G
    va_ = (vT0, vT1, vT2)[G]
    if G == 2:
        I(f"v_cmp_gt_u32 vcc, 8, v{vC16}")
        I("s_mov_b64 exec, vcc")
    I(f"buffer_store_dwordx4 {v4(pk)}, v{va_}, s[{sOUT}:{sOUT+3}], s{s_tmp} offen")
    I(f"buffer_store_dwordx4 {v4(pk+4)}, v{va_}, s[{sOUT}:{sOUT+3}], s{s_tmp} offen offset:16")
I("s_branch K3_END")

L("K3_SLOW")
I(f"s_mov_b32 s{s_mode}, 1")
L("K3_SLOW_SUB")
I(f"s_mul_i32 s{s_node0}, s2, 40")
I(f"s_mul_i32 s{s_tmp}, s{s_wv}, 10")
I(f"s_add_u32 s{s_node0}, s{s_node0}, s{s_tmp}")
I(f"s_lshl_b32 s{s_tmp}, s{s_psub}, 2")
I(f"s_add_u32 s{s_node0}, s{s_node0}, s{s_tmp}")
I(f"s_cmp_eq_u32 s{s_psub}, 2")
I(f"s_cselect_b32 s{s_nn}, 2, 4")
I(f"s_mul_i32 s{s_keyhi}, s{s_wv}, 3")
I(f"s_add_u32 s{s_keyhi}, s{s_keyhi}, s{s_psub}")
I(f"s_lshl_b32 s{s_keyhi}, s{s_keyhi}, 3")
I(f"s_mov_b32 s{s_cnt}, 0")
I(f"s_mov_b32 s{s_base}, 0")
I(f"s_mov_b32 s{s_tail}, 0")
I(f"s_mov_b32 s{s_pl}, s{s_lb}")
I(f"v_lshlrev_b32 v{vT2}, 2, v{vLane}")
L("K3_SLOW_SCAN")
I(f"buffer_load_dword v{vREC}, v{vT2}, s[{sDST}:{sDST+3}], s{s_base} offen")
I(f"buffer_load_dword v{vREC+1}, v{vT2}, s[{sSRC}:{sSRC+3}], s{s_base} offen")
I("s_waitcnt vmcnt(0)")
I(f"v_subrev_u32 v{vREC}, s{s_node0}, v{vREC}")
I(f"v_cmp_gt_u32 vcc, s{s_nn}, v{vREC}")
I("s_nop 1")
I("s_cbranch_vccz K3_SLOW_NEXT")
I(f"v_mbcnt_lo_u32_b32 v{vREC+2}, vcc_lo, 0")
I(f"v_mbcnt_hi_u32_b32 v{vREC+2}, vcc_hi, v{vREC+2}")
I(f"v_add_u32 v{vREC+2}, s{s_cnt}, v{vREC+2}")
I(f"v_lshlrev_b32 v{vREC+2}, 2, v{vREC+2}")
I(f"v_add_u32 v{vREC+2}, s{s_lb}, v{vREC+2}")
I(f"v_or_b32 v{vREC}, s{s_keyhi}, v{vREC}")
I(f"v_lshl_or_b32 v{vREC}, v{vREC+1}, 9, v{vREC}")
I(f"s_bcnt1_i32_b64 s{s_tmp}, vcc")
I("s_mov_b64 exec, vcc")
I(f"ds_write_b32 v{vREC+2}, v{vREC}")
I("s_mov_b64 exec, -1")
I(f"s_add_u32 s{s_cnt}, s{s_cnt}, s{s_tmp}")
L("K3_SLOW_CHK")
I(f"s_cmp_lt_u32 s{s_cnt}, 32")
I("s_cbranch_scc1 K3_SLOW_NEXT")
L("K3_SLOW_PROC")
read_da(s_lb)
I("s_waitcnt lgkmcnt(0)")
calc_da()
issue(s_pbuf)
I("s_waitcnt vmcnt(0)")
proc1(None)
proc2()
I(f"s_cmp_eq_u32 s{s_tail}, 1")
I("s_cbranch_scc1 K3_FIN")
I(f"v_add_u32 v{vREC}, s{s_lb}, v{vT2}")
I(f"ds_read_b32 v{vREC+1}, v{vREC} offset:128")
I("s_waitcnt lgkmcnt(0)")
I(f"ds_write_b32 v{vREC}, v{vREC+1}")
I(f"s_sub_u32 s{s_cnt}, s{s_cnt}, 32")
I("s_branch K3_SLOW_CHK")
L("K3_SLOW_NEXT")
I(f"s_add_u32 s{s_base}, s{s_base}, 256")
I(f"s_cmp_lt_u32 s{s_base}, {NE*4}")
I("s_cbranch_scc1 K3_SLOW_SCAN")
I(f"s_cmp_eq_u32 s{s_cnt}, 0")
I("s_cbranch_scc1 K3_FIN")
I(f"v_add_u32 v{vREC}, s{s_lb}, v{vT2}")
I(f"v_mov_b32 v{vREC+1}, -1")
I(f"v_cmp_le_u32 vcc, s{s_cnt}, v{vLane}")
I("s_mov_b64 exec, vcc")
I(f"ds_write_b32 v{vREC}, v{vREC+1}")
I("s_mov_b64 exec, -1")
I(f"s_mov_b32 s{s_tail}, 1")
I("s_branch K3_SLOW_PROC")
L("K3_END")
I("s_endpgm")

E('.section .rodata,"a"')
E(".p2align 6")
E(".amdhsa_kernel gat_prep_kernel")
E("  .amdhsa_next_free_vgpr 48")
E("  .amdhsa_next_free_sgpr 48")
E("  .amdhsa_accum_offset 48")
E("  .amdhsa_group_segment_fixed_size 0")
E("  .amdhsa_kernarg_size 72")
E("  .amdhsa_user_sgpr_count 2")
E("  .amdhsa_user_sgpr_kernarg_segment_ptr 1")
E("  .amdhsa_system_sgpr_workgroup_id_x 1")
E(".end_amdhsa_kernel")
E(".p2align 6")
E(f".amdhsa_kernel {KN}")
E("  .amdhsa_next_free_vgpr 512")
E("  .amdhsa_next_free_sgpr 96")
E("  .amdhsa_accum_offset 256")
E("  .amdhsa_group_segment_fixed_size 0")
E("  .amdhsa_kernarg_size 72")
E("  .amdhsa_user_sgpr_count 2")
E("  .amdhsa_user_sgpr_kernarg_segment_ptr 1")
E("  .amdhsa_system_sgpr_workgroup_id_x 1")
E(".end_amdhsa_kernel")

path = sys.argv[1] if len(sys.argv) > 1 else 'standalone__graph_attention_gat__graph.s'
open(path, 'w').write("\n".join(OUT) + "\n")
print("arch vgprs used:", NV_ARCH, "lines:", len(OUT))
```

```python
import sys

OUT = []
def E(s=""):
    OUT.append(s)
def I(s):
    OUT.append("    " + s)
def L(s):
    OUT.append(s + ":")

STAMPS = len(sys.argv) > 2 and sys.argv[2] == 'stamps'

N = 10000
NE = 160000
NCHUNK = 64
EPC = 2500
NT = 250
CELLS_BYTES = NCHUNK * NT * 128
WP_OFF = 0x200000
VT_OFF = 0x280000
WS_END = 0x281000
MARK = 0x7FFFFFF7
INV = 0x7FFFFFFF

L_CNT = 0
L_SD = 256
L_V = 2304
L_LIST = 6400
L_STG = L_LIST + 17 * 1024
BUFB = 8448
L_TOTAL = L_STG + 16 * BUFB
L_AGG = L_STG
AGG_STRIDE = 2080
assert L_TOTAL <= 163840 and L_STG % 16 == 0

HEADER = open('standalone__graph_attention_gat__graph.s.ref').read().split('\n')
for ln in HEADER:
    if ln.startswith('; @launch') or ln.startswith('; Override') or ln.startswith('; grid=ceil'):
        continue
    if not ln.startswith(';'):
        break
    E(ln)
E("; @launch kernel=gat_prep_kernel grid=(160,1,1) block=(512,1,1) lds=34816")
E("; @launch kernel=standalone__graph_attention_gat__graph_kernel grid=(250,1,1) block=(512,1,1) lds=%d" % L_TOTAL)
E('.amdgcn_target "amdgcn-amd-amdhsa--gfx950"')
E(".text")

def srd(d, b, nbytes):
    I(f"s_mov_b32 s{d}, s{b}")
    I(f"s_and_b32 s{d+1}, s{b+1}, 0xffff")
    I(f"s_mov_b32 s{d+2}, {nbytes}")
    I(f"s_mov_b32 s{d+3}, 0x00020000")

E(".globl gat_prep_kernel")
E(".p2align 8")
E(".type gat_prep_kernel,@function")
L("gat_prep_kernel")
I("s_cmp_ge_u32 s2, 160")
I("s_cbranch_scc1 K1_END")
I("s_load_dwordx4 s[4:7], s[0:1], 8")
I("s_load_dwordx4 s[8:11], s[0:1], 24")
I("s_load_dwordx2 s[12:13], s[0:1], 40")
I("s_load_dwordx2 s[14:15], s[0:1], 64")
I("s_cmp_ge_u32 s2, 128")
I("s_cbranch_scc1 K1_V")
I("s_cmp_ge_u32 s2, 64")
I("s_cbranch_scc1 K1_REPACK")
I("v_lshlrev_b32 v1, 4, v0")
for r in range(2, 6):
    I(f"v_mov_b32 v{r}, {INV}")
for k in range(4):
    I(f"ds_write_b128 v1, v[2:5] offset:{k*8192}")
I("v_lshlrev_b32 v6, 2, v0")
I("v_mov_b32 v7, 0")
I("ds_write_b32 v6, v7 offset:32768")
I(f"s_mul_i32 s28, s2, {EPC*4}")
for j in range(1, 5):
    I(f"s_add_u32 s{28+j}, s28, {j*2000}")
I("v_cmp_gt_u32 vcc, 500, v0")
I("s_waitcnt lgkmcnt(0)")
srd(20, 6, NE * 4)
srd(16, 4, NE * 4)
I("s_and_saveexec_b64 s[34:35], vcc")
for j in range(5):
    I(f"buffer_load_dword v{10+j}, v6, s[20:23], s{28+j} offen")
for j in range(5):
    I(f"buffer_load_dword v{15+j}, v6, s[16:19], s{28+j} offen")
srd(24, 14, CELLS_BYTES)
I("v_mov_b32 v8, 1")
I(f"v_mov_b32 v9, {32768+2044}")
I("s_barrier")
I("s_waitcnt vmcnt(5)")
for j in range(5):
    vD = 10 + j
    vq, vr, vt, vb = 20, 21, 30 + j, 23
    I(f"v_mul_u32_u24 v{vq}, 52429, v{vD}")
    I(f"v_lshrrev_b32 v{vq}, 18, v{vq}")
    I(f"v_mad_i32_i24 v{vr}, v{vq}, -5, v{vD}")
    I(f"v_lshrrev_b32 v{vt}, 3, v{vq}")
    I(f"v_lshlrev_b32 v24, 2, v{vt}")
    I(f"ds_add_rtn_u32 v{35+j}, v24, v8 offset:32768")
    I(f"v_and_b32 v{vb}, 7, v{vq}")
    I(f"v_cmp_lt_u32 vcc, 2, v{vr}")
    I(f"v_lshlrev_b32 v{vb}, 4, v{vb}")
    I(f"v_add_u32 v22, 5, v{vr}")
    I(f"v_cndmask_b32 v{vr}, v{vr}, v22, vcc")
    I(f"v_add_u32 v{vD}, v{vb}, v{vr}")
I("s_waitcnt vmcnt(0)")
for j in range(5):
    I(f"v_lshl_or_b32 v{15+j}, v{15+j}, 9, v{10+j}")
I("s_waitcnt lgkmcnt(0)")
for j in range(5):
    vt, vrank = 30 + j, 35 + j
    I(f"v_cmp_gt_u32 vcc, 32, v{vrank}")
    I(f"v_lshlrev_b32 v{vt}, 7, v{vt}")
    I(f"v_lshl_add_u32 v{vt}, v{vrank}, 2, v{vt}")
    I(f"v_cndmask_b32 v{vt}, v9, v{vt}, vcc")
    I(f"ds_write_b32 v{vt}, v{15+j}")
I("s_mov_b64 exec, s[34:35]")
I("v_lshrrev_b32 v2, 3, v0")
I("v_lshlrev_b32 v2, 2, v2")
I("v_and_b32 v3, 7, v0")
I("v_cmp_eq_u32 s[36:37], 7, v3")
I(f"v_mov_b32 v4, {MARK}")
I(f"s_mul_i32 s28, s2, {NT*128}")
for k in range(3):
    I(f"v_add_u32 v{5+k}, {k*8192}, v1")
I(f"v_add_u32 v8, {3*8192}, v1")
I("s_waitcnt lgkmcnt(0)")
I("s_barrier")
for k in range(4):
    I(f"ds_read_b128 v[{10+4*k}:{13+4*k}], v1 offset:{k*8192}")
    I(f"ds_read_b32 v{30+k}, v2 offset:{32768+k*256}")
I("s_waitcnt lgkmcnt(0)")
for k in range(4):
    I(f"v_cmp_lt_u32 vcc, 32, v{30+k}")
    I("s_and_b64 vcc, vcc, s[36:37]")
    I("s_nop 1")
    I(f"v_cndmask_b32 v{13+4*k}, v{13+4*k}, v4, vcc")
for k in range(3):
    I(f"buffer_store_dwordx4 v[{10+4*k}:{13+4*k}], v{5+k}, s[24:27], s28 offen")
I("v_cmp_gt_u32 vcc, 464, v0")
I("s_and_saveexec_b64 s[34:35], vcc")
I("s_cbranch_execz K1_END")
I("buffer_store_dwordx4 v[22:25], v8, s[24:27], s28 offen")
I("s_branch K1_END")
L("K1_REPACK")
I("v_lshrrev_b32 v1, 6, v0")
I("v_and_b32 v2, 63, v0")
I("v_readfirstlane_b32 s28, v1")
I("s_sub_u32 s29, s2, 64")
I("s_lshl_b32 s29, s29, 3")
I("s_add_u32 s29, s29, s28")
I("s_lshr_b32 s30, s29, 4")
I("s_lshr_b32 s31, s29, 2")
I("s_and_b32 s31, s31, 3")
I("s_and_b32 s32, s29, 3")
I("s_and_b32 s33, s31, 1")
I("s_lshl_b32 s33, s33, 9")
I("s_lshl_b32 s34, s30, 3")
I("s_add_u32 s33, s33, s34")
I("s_lshr_b32 s34, s31, 1")
I("s_lshl_b32 s34, s34, 2")
I("s_add_u32 s33, s33, s34")
I("s_lshl_b32 s33, s33, 9")
I("s_lshl_b32 s34, s32, 7")
I("s_add_u32 s33, s33, s34")
I("s_add_u32 s36, s33, 131072")
I("v_lshlrev_b32 v3, 1, v2")
I("s_waitcnt lgkmcnt(0)")
srd(16, 8, 4 * 256 * 256 * 2)
for i in range(8):
    so = "s33" if i < 4 else "s36"
    I(f"buffer_load_ushort v{10+i}, v3, s[16:19], {so} offen offset:{(i&3)*512}")
srd(24, 14, WS_END)
I("s_lshl_b32 s34, s32, 6")
I("s_add_u32 s34, s34, s30")
I("s_lshl_b32 s34, s34, 11")
I("s_lshl_b32 s35, s31, 8")
I("s_add_u32 s34, s34, s35")
I(f"s_add_u32 s34, s34, {WP_OFF}")
I("v_lshrrev_b32 v4, 5, v2")
I("v_lshlrev_b32 v4, 16, v4")
I("v_bfe_u32 v5, v2, 2, 1")
I("v_lshl_or_b32 v4, v5, 10, v4")
I("v_bfe_u32 v5, v2, 3, 2")
I("v_lshl_or_b32 v4, v5, 6, v4")
I("v_and_b32 v5, 3, v2")
I("v_lshl_or_b32 v4, v5, 4, v4")
I("s_waitcnt vmcnt(0)")
for i in range(4):
    I(f"v_lshl_or_b32 v{20+i}, v{11+2*i}, 16, v{10+2*i}")
I("buffer_store_dwordx4 v[20:23], v4, s[24:27], s34 offen")
I("s_branch K1_END")
L("K1_V")
I("v_lshrrev_b32 v1, 4, v0")
I("v_and_b32 v2, 15, v0")
I("s_sub_u32 s29, s2, 128")
I("s_lshl_b32 s29, s29, 5")
I("v_add_u32 v1, s29, v1")
I("v_lshlrev_b32 v3, 9, v1")
I("v_lshl_add_u32 v3, v2, 5, v3")
I("v_lshrrev_b32 v4, 8, v1")
I("v_lshlrev_b32 v4, 9, v4")
I("v_lshl_add_u32 v4, v2, 5, v4")
I("s_waitcnt lgkmcnt(0)")
srd(16, 8, 4 * 256 * 256 * 2)
srd(20, 10, 2048)
srd(28, 12, 2048)
srd(24, 14, WS_END)
I("buffer_load_dwordx4 v[8:11], v3, s[16:19], 0 offen")
I("buffer_load_dwordx4 v[12:15], v3, s[16:19], 0 offen offset:16")
I("buffer_load_dwordx4 v[16:19], v4, s[20:23], 0 offen")
I("buffer_load_dwordx4 v[20:23], v4, s[20:23], 0 offen offset:16")
I("buffer_load_dwordx4 v[24:27], v4, s[28:31], 0 offen")
I("buffer_load_dwordx4 v[28:31], v4, s[28:31], 0 offen offset:16")
I("v_mov_b32 v32, 0")
I("v_mov_b32 v33, 0")
I("s_waitcnt vmcnt(0)")
for i in range(8):
    I(f"v_lshlrev_b32 v34, 16, v{8+i}")
    I(f"v_and_b32 v35, 0xffff0000, v{8+i}")
    I(f"v_lshlrev_b32 v36, 16, v{16+i}")
    I(f"v_and_b32 v37, 0xffff0000, v{16+i}")
    I(f"v_lshlrev_b32 v38, 16, v{24+i}")
    I(f"v_and_b32 v39, 0xffff0000, v{24+i}")
    I("v_fmac_f32 v32, v34, v36")
    I("v_fmac_f32 v33, v34, v38")
    I("v_fmac_f32 v32, v35, v37")
    I("v_fmac_f32 v33, v35, v39")
for mod in ["quad_perm:[1,0,3,2]", "quad_perm:[2,3,0,1]", "row_half_mirror", "row_mirror"]:
    I("s_nop 1")
    I(f"v_add_f32_dpp v32, v32, v32 {mod} row_mask:0xf bank_mask:0xf")
    I(f"v_add_f32_dpp v33, v33, v33 {mod} row_mask:0xf bank_mask:0xf")
I("v_cmp_eq_u32 vcc, 0, v2")
I("s_nop 1")
I("v_cndmask_b32 v32, v33, v32, vcc")
I("v_mul_f32 v32, 0x3fb8aa3b, v32")
I("v_cvt_pk_bf16_f32 v32, v32, v32")
I("v_lshlrev_b32 v5, 1, v1")
I("v_lshl_add_u32 v5, v2, 11, v5")
I(f"v_add_u32 v5, {VT_OFF}, v5")
I("v_cmp_gt_u32 vcc, 2, v2")
I("s_and_saveexec_b64 s[34:35], vcc")
I("s_cbranch_execz K1_END")
I("buffer_store_short v32, v5, s[24:27], 0 offen")
L("K1_END")
I("s_endpgm")

KN = "standalone__graph_attention_gat__graph_kernel"
E(f".globl {KN}")
E(".p2align 8")
E(f".type {KN},@function")

class Alloc:
    def __init__(self, start, limit):
        self.n = start
        self.limit = limit
    def __call__(self, cnt, align=1):
        self.n = (self.n + align - 1) // align * align
        r = self.n
        self.n += cnt
        assert self.n <= self.limit, ("reg overflow", self.n)
        return r

va = Alloc(1, 256)
vC16 = va(1); vG = va(1); vLane = va(1)
vAS0 = va(1); vAT0 = va(1); vAS = va(1); vAT = va(1); vAR0 = va(1); vAD0 = va(1); vLoff = va(1)
vKEY = va(1); vSD1 = va(1); vWoff = va(1)
vT2 = va(1); vT3 = va(1)
vT0 = va(2, 2); vT1 = vT0 + 1
vP = va(2, 2)
vONE = va(2, 2)
vSDq = va(4, 4)
vDEN = va(4, 4)
vACC = va(64, 4)
vH0 = va(32, 4)
vVS = va(32, 4)
vPOOL = va(64, 4)
vDA = va(8, 4)
vREC = va(4, 4)
vS = va(4, 4)
vU = va(4, 4)
NV = va.n

sX = 16; sWS = 20; sOUT = 24; sSRC = 28; sDST = 32
s_wv = 36; s_lb = 37; s_n0 = 38; s_n1 = 39
s_pl = 41; s_prem = 42; s_psub = 43; s_il = 44; s_irem = 45
s_buf = 47; s_bufx = 46; s_ahead = 48; s_mode = 49; s_mask = 50; s_tmp = 51; s_tmp2 = 52
s_node0 = 53; s_nn = 54; s_keyhi = 55; s_cnt = 56; s_base = 57; s_tail = 58
s_first = 60; s_inv = 62; s_tmp3 = 63
sM = 64
sMA = 80
sMB = 14
s_wo = 82
s_st = 83

def stamp(i):
    if STAMPS:
        I("s_memtime s[98:99]")
        I("s_waitcnt lgkmcnt(0)")
        I(f"s_mov_b32 s{s_st+i}, s98")
def v4(r): return f"v[{r}:{r+3}]"

L(KN)
I(f"s_cmp_ge_u32 s2, {NT}")
I("s_cbranch_scc1 K3_END")
stamp(0)
if STAMPS:
    I("s_memrealtime s[98:99]")
    I("s_waitcnt lgkmcnt(0)")
    I(f"s_mov_b32 s{s_st+14}, s98")
I("s_load_dwordx2 s[12:13], s[0:1], 64")
I("s_load_dwordx4 s[4:7], s[0:1], 0")
I("s_load_dwordx2 s[8:9], s[0:1], 16")
I("s_load_dwordx2 s[10:11], s[0:1], 48")
I(f"v_lshrrev_b32 v{vT0}, 6, v0")
I(f"v_and_b32 v{vLane}, 63, v0")
I(f"v_and_b32 v{vC16}, 15, v0")
I(f"v_readfirstlane_b32 s{s_wv}, v{vT0}")
I(f"v_bfe_u32 v{vG}, v0, 4, 2")
I(f"v_lshlrev_b32 v{vT1}, 4, v0")
I(f"s_mov_b32 s{s_inv}, {INV}")
for r in range(4):
    I(f"v_mov_b32 v{vSDq+r}, s{s_inv}")
for k in range(2):
    I(f"ds_write_b128 v{vT1}, {v4(vSDq)} offset:{L_LIST + k*8192}")
I(f"v_lshlrev_b32 v{vT2}, 2, v{vLane}")
I(f"v_mov_b32 v{vT0}, 0")
I(f"ds_write_b32 v{vT2}, v{vT0} offset:{L_CNT}")
vC = vDA
I(f"v_lshrrev_b32 v{vT0}, 3, v0")
I(f"v_mul_u32_u24 v{vT0}, {NT*128}, v{vT0}")
I(f"v_and_b32 v{vT2}, 7, v0")
I(f"v_lshl_add_u32 v{vT0}, v{vT2}, 4, v{vT0}")
I(f"s_lshl_b32 s{s_tmp}, s2, 7")
I(f"v_lshlrev_b32 v{vT2}, 3, v0")
I(f"s_mov_b32 s{s_cnt}, {VT_OFF}")
I("s_waitcnt lgkmcnt(0)")
srd(sWS, 12, WS_END)
I(f"buffer_load_dwordx4 {v4(vC)}, v{vT0}, s[{sWS}:{sWS+3}], s{s_tmp} offen")
I(f"buffer_load_dwordx2 v[{vS}:{vS+1}], v{vT2}, s[{sWS}:{sWS+3}], s{s_cnt} offen")
I("s_barrier")
stamp(1)
srd(sX, 4, N * 512)
I(f"s_mul_i32 s{s_buf}, s{s_wv}, {2*BUFB}")
I(f"s_add_u32 s{s_buf}, s{s_buf}, {L_STG}")
I(f"s_add_u32 s{s_tmp}, s{s_buf}, {BUFB}")
I(f"s_xor_b32 s{s_bufx}, s{s_buf}, s{s_tmp}")
I(f"v_and_b32 v{vT0}, 7, v{vC16}")
I(f"v_mul_u32_u24 v{vAS0}, 1056, v{vT0}")
I(f"v_lshrrev_b32 v{vT0}, 3, v{vC16}")
I(f"v_lshl_add_u32 v{vAS0}, v{vT0}, 9, v{vAS0}")
I(f"v_lshl_add_u32 v{vAS0}, v{vG}, 4, v{vAS0}")
I(f"v_bfe_u32 v{vT0}, v{vLane}, 2, 3")
I(f"v_mul_u32_u24 v{vAT0}, 1056, v{vT0}")
I(f"v_lshrrev_b32 v{vT0}, 5, v{vLane}")
I(f"v_lshl_add_u32 v{vAT0}, v{vT0}, 9, v{vAT0}")
I(f"v_lshlrev_b32 v{vAD0}, 5, v{vT0}")
I(f"v_and_b32 v{vT0}, 3, v{vLane}")
I(f"v_lshl_add_u32 v{vAT0}, v{vT0}, 3, v{vAT0}")
I(f"v_lshlrev_b32 v{vAR0}, 4, v{vG}")
I(f"v_and_b32 v{vT0}, 31, v{vLane}")
I(f"v_lshlrev_b32 v{vLoff}, 4, v{vT0}")
I(f"v_lshlrev_b32 v{vWoff}, 4, v{vLane}")
I(f"s_lshl_b32 s{s_tmp}, s{s_wv}, 16")
I(f"s_add_u32 s{s_wo}, s{s_tmp}, {WP_OFF}")
I(f"s_mov_b32 s{s_mask}, 0xfffffe00")
for r in range(2):
    I(f"v_mov_b32 v{vONE+r}, 0x3f803f80")
I(f"s_lshl_b32 s{s_lb}, s{s_wv}, 11")
I(f"s_add_u32 s{s_lb}, s{s_lb}, {L_LIST}")
I(f"s_mov_b32 s{s_psub}, 0")
I(f"s_mov_b32 s{s_mode}, 0")
I(f"s_mov_b32 s{s_first}, 1")
I(f"v_cmp_gt_u32 s[{sMA}:{sMA+1}], 12, v{vC16}")
I(f"v_cmp_gt_u32 s[{sMB}:{sMB+1}], 8, v{vC16}")
I(f"v_mov_b32 v{vT0}, 1")
I(f"s_waitcnt vmcnt(1)")
stamp(2)
vA8 = vH0
vP8 = vH0 + 4
for k in range(4):
    I(f"v_cmp_ne_u32 s[{sM+2*k}:{sM+2*k+1}], s{s_inv}, v{vC+k}")
    I(f"v_bfe_u32 v{vA8+k}, v{vC+k}, 3, 5")
    I(f"v_lshlrev_b32 v{vA8+k}, 2, v{vA8+k}")
for k in range(4):
    I(f"s_mov_b64 exec, s[{sM+2*k}:{sM+2*k+1}]")
    I(f"ds_add_rtn_u32 v{vP8+k}, v{vA8+k}, v{vT0} offset:{L_CNT}")
I("s_mov_b64 exec, -1")
for k in range(4):
    I(f"v_min_u32 v{vA8+k}, 64, v{vA8+k}")
I("s_waitcnt vmcnt(0)")
I(f"ds_write_b64 v{vT2}, v[{vS}:{vS+1}] offset:{L_V}")
I("s_waitcnt lgkmcnt(1)")
for k in range(4):
    I(f"v_min_u32 v{vP8+k}, 255, v{vP8+k}")
    I(f"v_lshlrev_b32 v{vP8+k}, 2, v{vP8+k}")
    I(f"v_lshl_add_u32 v{vP8+k}, v{vA8+k}, 8, v{vP8+k}")
for k in range(4):
    I(f"s_mov_b64 exec, s[{sM+2*k}:{sM+2*k+1}]")
    I(f"ds_write_b32 v{vP8+k}, v{vC+k} offset:{L_LIST}")
I("s_mov_b64 exec, -1")
I(f"v_and_b32 v{vT1}, 31, v{vLane}")
I(f"v_lshlrev_b32 v{vT3}, 2, v{vT1}")
I(f"v_mov_b32 v{vT2}, 256")
I(f"v_cmp_eq_u32 vcc, 30, v{vT1}")
I(f"v_cmp_gt_u32 s[{sM}:{sM+1}], 16, v{vT1}")
I(f"s_lshl_b32 s{s_tmp}, s{s_wv}, 1")
I(f"v_cndmask_b32 v{vT2}, v{vT2}, 0, vcc")
I(f"s_or_b64 s[{sM}:{sM+1}], s[{sM}:{sM+1}], vcc")
I(f"s_add_u32 s{s_tmp2}, s{s_tmp}, 1")
I(f"v_add_u32 v{vT1}, s{s_lb}, v{vAD0}")
I("s_waitcnt lgkmcnt(0)")
I("s_barrier")
stamp(3)
I(f"ds_read_b32 v{vT0}, v{vT3} offset:{L_CNT}")
for q in range(2):
    I(f"ds_read_b128 {v4(vDA+4*q)}, v{vT1} offset:{q*16}")
I("s_waitcnt lgkmcnt(2)")
I(f"v_cmp_gt_u32 vcc, v{vT0}, v{vT2}")
I(f"v_readlane_b32 s{s_n0}, v{vT0}, s{s_tmp}")
I(f"v_readlane_b32 s{s_n1}, v{vT0}, s{s_tmp2}")
I(f"s_and_b64 vcc, vcc, s[{sM}:{sM+1}]")
I("s_cbranch_vccnz K3_SLOW")
for s in (s_n0, s_n1):
    I(f"s_add_u32 s{s}, s{s}, 15")
    I(f"s_lshr_b32 s{s}, s{s}, 4")
    I(f"s_max_u32 s{s}, s{s}, 1")
I(f"s_mov_b32 s{s_pl}, s{s_lb}")
I(f"s_mov_b32 s{s_prem}, s{s_n0}")
I(f"s_mov_b32 s{s_il}, s{s_lb}")
I(f"s_add_u32 s{s_irem}, s{s_n0}, s{s_n1}")

_uid = [0]
def uid(p):
    _uid[0] += 1
    return f"{p}_{_uid[0]}"

def read_da(s_list):
    I(f"v_add_u32 v{vT1}, s{s_list}, v{vAD0}")
    for q in range(2):
        I(f"ds_read_b128 {v4(vDA+4*q)}, v{vT1} offset:{q*16}")

def issue(sb):
    I(f"s_mov_b32 m0, s{sb}")
    for i in range(8):
        I(f"v_and_or_b32 v{vDA+i}, v{vDA+i}, s{s_mask}, v{vLoff}")
        I(f"buffer_load_dwordx4 v{vDA+i}, s[{sX}:{sX+3}], 0 offen lds")
        if i < 7:
            I("s_add_u32 m0, m0, 1056")

def advance_issue():
    I(f"s_add_u32 s{s_il}, s{s_il}, 64")
    I(f"s_sub_u32 s{s_irem}, s{s_irem}, 1")
    I(f"s_add_u32 s{s_tmp}, s{s_lb}, 1024")
    I(f"s_cmp_eq_u32 s{s_irem}, s{s_n1}")
    I(f"s_cselect_b32 s{s_il}, s{s_tmp}, s{s_il}")

vTR = vPOOL + 32
def proc1a(s_list_next):
    I(f"v_add_u32 v{vAS}, s{s_buf}, v{vAS0}")
    I(f"v_add_u32 v{vAT}, s{s_buf}, v{vAT0}")
    I(f"v_add_u32 v{vT0}, s{s_pl}, v{vAR0}")
    for ks in range(8):
        I(f"ds_read_b128 {v4(vPOOL+4*ks)}, v{vAS} offset:{ks*64}")
    I(f"ds_read_b128 {v4(vREC)}, v{vT0}")
    nlater = 1
    if s_list_next is not None:
        read_da(s_list_next)
        nlater += 2
    for j in range(16):
        I(f"ds_read_b64_tr_b16 v[{vTR+2*j}:{vTR+2*j+1}], v{vAT} offset:{j*32}")
    I("s_waitcnt lgkmcnt(15)")
    for ks in range(8):
        c = v4(vSDq) if ks == 0 else v4(vS)
        I(f"v_mfma_f32_16x16x32_bf16 {v4(vS)}, {v4(vPOOL+4*ks)}, {v4(vVS+4*ks)}, {c}")
    for k in range(4):
        I(f"v_cmp_eq_u32_sdwa s[{sM+2*k}:{sM+2*k+1}], v{vREC+k}, v{vKEY} src0_sel:BYTE_0 src1_sel:DWORD")
    I("s_waitcnt lgkmcnt(0)")

def proc1b():
    for k in range(4):
        I(f"v_mul_f32 v{vU+k}, 0x3e4ccccd, v{vS+k}")
    for k in range(4):
        I(f"v_max_f32 v{vU+k}, v{vS+k}, v{vU+k}")
    for k in range(4):
        I(f"v_exp_f32 v{vU+k}, v{vU+k}")
    for k in range(4):
        I(f"v_cndmask_b32 v{vU+k}, 0, v{vU+k}, s[{sM+2*k}:{sM+2*k+1}]")
    for k in range(2):
        I(f"v_cvt_pk_bf16_f32 v{vP+k}, v{vU+2*k}, v{vU+2*k+1}")

def v2(r): return f"v[{r}:{r+1}]"
def proc2():
    f = uid("FIRST"); d = uid("P2D")
    I(f"s_cmp_eq_u32 s{s_first}, 1")
    I(f"s_cbranch_scc1 {f}")
    I(f"v_mfma_f32_16x16x16_bf16 {v4(vDEN)}, {v2(vONE)}, {v2(vP)}, {v4(vDEN)}")
    for j in range(16):
        I(f"v_mfma_f32_16x16x16_bf16 {v4(vACC+4*j)}, {v2(vTR+2*j)}, {v2(vP)}, {v4(vACC+4*j)}")
    I(f"s_branch {d}")
    L(f)
    I(f"v_mfma_f32_16x16x16_bf16 {v4(vDEN)}, {v2(vONE)}, {v2(vP)}, 0")
    for j in range(16):
        I(f"v_mfma_f32_16x16x16_bf16 {v4(vACC+4*j)}, {v2(vTR+2*j)}, {v2(vP)}, 0")
    I(f"s_mov_b32 s{s_first}, 0")
    L(d)

def rows_load():
    I(f"s_mul_i32 s{s_node0}, s2, 40")
    I(f"s_mul_i32 s{s_tmp2}, s{s_wv}, 5")
    I(f"s_add_u32 s{s_node0}, s{s_node0}, s{s_tmp2}")
    I(f"s_lshl_b32 s{s_tmp2}, s{s_node0}, 9")
    I(f"v_min_u32 v{vT1}, 4, v{vC16}")
    I(f"v_lshlrev_b32 v{vT1}, 9, v{vT1}")
    I(f"v_lshl_add_u32 v{vT1}, v{vG}, 4, v{vT1}")
    for ks in range(8):
        I(f"buffer_load_dwordx4 {v4(vPOOL+4*ks)}, v{vT1}, s[{sX}:{sX+3}], s{s_tmp2} offen offset:{ks*64}")

def sdst():
    I(f"v_and_b32 v{vT2}, 3, v{vC16}")
    I(f"v_lshlrev_b32 v{vT3}, 9, v{vT2}")
    I(f"v_lshl_add_u32 v{vT3}, v{vG}, 4, v{vT3}")
    for ks in range(8):
        I(f"ds_read_b128 {v4(vPOOL+32+4*ks)}, v{vT3} offset:{L_V+2048+ks*64}")
    for ks in range(8):
        I(f"ds_read_b128 {v4(vVS+4*ks)}, v{vT3} offset:{L_V+ks*64}")
    I(f"s_lshl_b32 s{s_tmp}, s{s_wv}, 8")
    I(f"v_lshlrev_b32 v{vT2}, 6, v{vT2}")
    I(f"v_add_u32 v{vT2}, s{s_tmp}, v{vT2}")
    I(f"v_lshl_add_u32 v{vT3}, v{vG}, 4, v{vT2}")
    I(f"v_lshrrev_b32 v{vKEY}, 2, v{vC16}")
    I(f"v_lshl_add_u32 v{vT2}, v{vKEY}, 2, v{vT2}")
    I(f"v_cmp_gt_u32 s[{sM}:{sM+1}], 4, v{vC16}")
    I(f"s_lshl_b32 s{s_tmp}, s{s_wv}, 4")
    I(f"v_add_u32 v{vKEY}, s{s_tmp}, v{vKEY}")
    I("s_waitcnt lgkmcnt(8)")
    for ks in range(8):
        c = "0" if ks == 0 else v4(vS)
        I(f"v_mfma_f32_16x16x32_bf16 {v4(vS)}, {v4(vPOOL+4*ks)}, {v4(vPOOL+32+4*ks)}, {c}")
    I("s_nop 7")
    I(f"s_mov_b64 exec, s[{sM}:{sM+1}]")
    I(f"ds_write_b128 v{vT3}, {v4(vS)} offset:{L_SD}")
    I("s_mov_b64 exec, -1")
    I(f"ds_read_b32 v{vSDq}, v{vT2} offset:{L_SD}")
    I(f"ds_read_b32 v{vSD1}, v{vT2} offset:{L_SD+12}")
    I("s_waitcnt lgkmcnt(0)")
    for r in range(1, 4):
        I(f"v_mov_b32 v{vSDq+r}, v{vSDq}")

I("s_waitcnt lgkmcnt(0)")
issue(s_buf)
advance_issue()
read_da(s_il)
I(f"s_xor_b32 s{s_tmp2}, s{s_buf}, s{s_bufx}")
I("s_waitcnt lgkmcnt(0)")
issue(s_tmp2)
advance_issue()
I(f"s_mov_b32 s{s_ahead}, 2")
rows_load()
I("s_waitcnt vmcnt(0)")
sdst()
stamp(4)
stamp(5)

L("K3_LOOP")
I(f"s_cmp_ge_u32 s{s_ahead}, 2")
I("s_cbranch_scc1 K3_W8")
I("s_waitcnt vmcnt(0)")
L("K3_W8")
I("s_waitcnt vmcnt(8)")
proc1a(s_il)
I(f"s_cmp_eq_u32 s{s_irem}, 0")
I("s_cbranch_scc1 K3_NOISSUE")
issue(s_buf)
advance_issue()
I(f"s_add_u32 s{s_ahead}, s{s_ahead}, 1")
L("K3_NOISSUE")
I(f"s_sub_u32 s{s_ahead}, s{s_ahead}, 1")
I("s_nop 3")
proc1b()
I(f"s_xor_b32 s{s_buf}, s{s_buf}, s{s_bufx}")
I(f"s_add_u32 s{s_pl}, s{s_pl}, 64")
I(f"s_sub_u32 s{s_prem}, s{s_prem}, 1")
proc2()
I(f"s_cmp_lg_u32 s{s_prem}, 0")
I("s_cbranch_scc1 K3_LOOP")
L("K3_FIN")
I(f"s_cmp_eq_u32 s{s_psub}, 1")
I("s_cbranch_scc1 K3_F1")

NRING = 8
def wload(ks, slot):
    if ks % 2 == 0:
        I(f"s_add_u32 s{s_tmp3}, s{s_wo}, {ks*2048}")
    for j in range(2):
        I(f"buffer_load_dwordx4 {v4(vPOOL + 8*slot + 4*j)}, v{vWoff}, s[{sWS}:{sWS+3}], s{s_tmp3} offen offset:{(ks%2)*2048 + j*1024}")

def finalize(sub):
    I(f"v_add_f32 v{vT0}, 0x3089705f, v{vDEN}")
    I(f"v_rcp_f32 v{vT0}, v{vT0}")
    I("s_nop 0")
    I(f"v_mul_f32 v{vT0}, 0.25, v{vT0}")
    if sub == 0:
        for r in range(4):
            I(f"v_mov_b32 v{vSDq+r}, v{vSD1}")
        I(f"v_add_u32 v{vKEY}, 8, v{vKEY}")
        I(f"s_mov_b32 s{s_psub}, 1")
        I(f"s_add_u32 s{s_pl}, s{s_lb}, 1024")
        I(f"s_mov_b32 s{s_prem}, s{s_n1}")
        I(f"s_mov_b32 s{s_first}, 1")
    else:
        I("s_nop 7")
    for j in range(16):
        d = vH0 + 2*j if sub == 0 else vACC + 4*j
        a = vACC + 4*j
        I(f"v_pk_mul_f32 v[{a}:{a+1}], v[{a}:{a+1}], v[{vT0}:{vT0+1}] op_sel_hi:[1,0]")
        I(f"v_pk_mul_f32 v[{a+2}:{a+3}], v[{a+2}:{a+3}], v[{vT0}:{vT0+1}] op_sel_hi:[1,0]")
        I(f"v_cvt_pk_bf16_f32 v{d}, v{a}, v{a+1}")
        I(f"v_cvt_pk_bf16_f32 v{d+1}, v{a+2}, v{a+3}")
    if sub == 0:
        I(f"s_cmp_eq_u32 s{s_mode}, 0")
        I("s_cbranch_scc1 K3_LOOP")
        I("s_branch K3_SLOW_SUB")

L("K3_F0")
stamp(6)
finalize(0)
L("K3_F1")
stamp(8)
for ks in range(NRING):
    wload(ks, ks)
finalize(1)
I(f"v_lshrrev_b32 v{vT0}, 2, v{vC16}")
I(f"s_mul_i32 s{s_tmp}, s{s_wv}, 5")
I(f"v_add_u32 v{vT1}, s{s_tmp}, v{vT0}")
I(f"v_mul_u32_u24 v{vT1}, {AGG_STRIDE}, v{vT1}")
I(f"v_and_b32 v{vT2}, 3, v{vC16}")
I(f"v_lshl_add_u32 v{vT1}, v{vT2}, 3, v{vT1}")
I(f"v_lshl_add_u32 v{vT1}, v{vG}, 5, v{vT1}")
I(f"v_add_u32 v{vT1}, {L_AGG}, v{vT1}")
I(f"v_mul_u32_u24 v{vAS}, {AGG_STRIDE}, v{vC16}")
I(f"v_lshl_add_u32 v{vAS}, v{vG}, 4, v{vAS}")
I(f"v_add_u32 v{vAS}, {L_AGG}, v{vAS}")
I(f"v_add_u32 v{vAT}, {32*AGG_STRIDE}, v{vAS}")
srd(sOUT, 10, N * 512)
I("s_barrier")
stamp(9)
I(f"s_mov_b64 exec, s[{sMA}:{sMA+1}]")
for j in range(16):
    I(f"ds_write_b64 v{vT1}, v[{vH0+2*j}:{vH0+2*j+1}] offset:{j*128}")
I(f"s_mov_b64 exec, s[{sMB}:{sMB+1}]")
for j in range(16):
    I(f"ds_write_b64 v{vT1}, v[{vACC+4*j}:{vACC+4*j+1}] offset:{3*AGG_STRIDE+j*128}")
I("s_mov_b64 exec, -1")
I("s_waitcnt lgkmcnt(0)")
I("s_barrier")
stamp(10)
vO = vH0
vB = vACC
def bread(ks, slot):
    base = vB + 12*slot
    I(f"ds_read_b128 {v4(base)}, v{vAS} offset:{ks*64}")
    I(f"ds_read_b128 {v4(base+4)}, v{vAS} offset:{16*AGG_STRIDE+ks*64}")
    I(f"ds_read_b128 {v4(base+8)}, v{vAT} offset:{ks*64}")
bread(0, 0)
for ks in range(32):
    if ks + 1 < 32:
        bread(ks + 1, (ks + 1) & 1)
    n_v = 2 * (min(32, ks + NRING) - ks - 1)
    I(f"s_waitcnt vmcnt({n_v}) lgkmcnt({3 if ks + 1 < 32 else 0})")
    for j in range(2):
        w = v4(vPOOL + 8*(ks % NRING) + 4*j)
        for G in range(3):
            o = vO + 8*G + 4*j
            c = "0" if ks == 0 else v4(o)
            I(f"v_mfma_f32_16x16x32_bf16 {v4(o)}, {w}, {v4(vB + 12*(ks&1) + 4*G)}, {c}")
    if ks + NRING < 32:
        wload(ks + NRING, ks % NRING)
stamp(11)
I(f"s_mul_i32 s{s_tmp}, s2, {40*512}")
I(f"s_lshl_b32 s{s_tmp2}, s{s_wv}, 6")
I(f"s_add_u32 s{s_tmp}, s{s_tmp}, s{s_tmp2}")
I(f"v_lshlrev_b32 v{vT0}, 9, v{vC16}")
I(f"v_lshl_add_u32 v{vT0}, v{vG}, 4, v{vT0}")
I(f"v_add_u32 v{vT1}, {16*512}, v{vT0}")
I(f"v_add_u32 v{vT2}, {32*512}, v{vT0}")
I("s_nop 4")
for G in range(3):
    pk = vACC + 32 + 4*G
    for j in range(2):
        o = vO + 8*G + 4*j
        I(f"v_cvt_pk_bf16_f32 v{pk+2*j}, v{o}, v{o+1}")
        I(f"v_cvt_pk_bf16_f32 v{pk+2*j+1}, v{o+2}, v{o+3}")
    va_ = (vT0, vT1, vT2)[G]
    if G == 2:
        I(f"s_mov_b64 exec, s[{sMB}:{sMB+1}]")
    I(f"buffer_store_dwordx4 {v4(pk)}, v{va_}, s[{sOUT}:{sOUT+3}], s{s_tmp} offen")
if STAMPS:
    I("s_mov_b64 exec, -1")
    I("s_waitcnt vmcnt(0)")
    stamp(12)
    I("s_memrealtime s[98:99]")
    I("s_waitcnt lgkmcnt(0)")
    I(f"s_mov_b32 s{s_st+13}, s98")
    I(f"s_mov_b32 s{s_st+7}, s{s_st+6}")
    I(f"s_mov_b32 s{sWS+2}, 0x400000")
    I(f"s_lshl_b32 s{s_tmp}, s2, 3")
    I(f"s_add_u32 s{s_tmp}, s{s_tmp}, s{s_wv}")
    I(f"s_lshl_b32 s{s_tmp}, s{s_tmp}, 7")
    I(f"s_add_u32 s{s_tmp}, s{s_tmp}, 0x300000")
    I(f"v_mov_b32 v{vT0}, 0")
    for i in range(15):
        I(f"v_mov_b32 v{vT1}, s{s_st+i}")
        I(f"buffer_store_dword v{vT1}, v{vT0}, s[{sWS}:{sWS+3}], s{s_tmp} offen offset:{4*i}")
        I("s_nop 1")
I("s_branch K3_END")

L("K3_SLOW")
I(f"s_mov_b32 s{s_mode}, 1")
srd(sSRC, 6, NE * 4)
srd(sDST, 8, NE * 4)
rows_load()
I("s_waitcnt vmcnt(0) lgkmcnt(0)")
sdst()
L("K3_SLOW_SUB")
I(f"s_mul_i32 s{s_node0}, s2, 40")
I(f"s_mul_i32 s{s_tmp}, s{s_wv}, 5")
I(f"s_add_u32 s{s_node0}, s{s_node0}, s{s_tmp}")
I(f"s_mul_i32 s{s_tmp}, s{s_psub}, 3")
I(f"s_add_u32 s{s_node0}, s{s_node0}, s{s_tmp}")
I(f"s_sub_u32 s{s_nn}, 3, s{s_psub}")
I(f"s_lshl_b32 s{s_keyhi}, s{s_wv}, 1")
I(f"s_add_u32 s{s_keyhi}, s{s_keyhi}, s{s_psub}")
I(f"s_lshl_b32 s{s_keyhi}, s{s_keyhi}, 3")
I(f"s_mov_b32 s{s_cnt}, 0")
I(f"s_mov_b32 s{s_base}, 0")
I(f"s_mov_b32 s{s_tail}, 0")
I(f"s_mov_b32 s{s_pl}, s{s_lb}")
I(f"v_lshlrev_b32 v{vT2}, 2, v{vLane}")
L("K3_SLOW_SCAN")
I(f"buffer_load_dword v{vREC}, v{vT2}, s[{sDST}:{sDST+3}], s{s_base} offen")
I(f"buffer_load_dword v{vREC+1}, v{vT2}, s[{sSRC}:{sSRC+3}], s{s_base} offen")
I("s_waitcnt vmcnt(0)")
I(f"v_subrev_u32 v{vREC}, s{s_node0}, v{vREC}")
I(f"v_cmp_gt_u32 vcc, s{s_nn}, v{vREC}")
I("s_nop 1")
I("s_cbranch_vccz K3_SLOW_NEXT")
I(f"v_mbcnt_lo_u32_b32 v{vREC+2}, vcc_lo, 0")
I(f"v_mbcnt_hi_u32_b32 v{vREC+2}, vcc_hi, v{vREC+2}")
I(f"v_add_u32 v{vREC+2}, s{s_cnt}, v{vREC+2}")
I(f"v_lshlrev_b32 v{vREC+2}, 2, v{vREC+2}")
I(f"v_add_u32 v{vREC+2}, s{s_lb}, v{vREC+2}")
I(f"v_or_b32 v{vREC}, s{s_keyhi}, v{vREC}")
I(f"v_lshl_or_b32 v{vREC}, v{vREC+1}, 9, v{vREC}")
I(f"s_bcnt1_i32_b64 s{s_tmp}, vcc")
I("s_mov_b64 exec, vcc")
I(f"ds_write_b32 v{vREC+2}, v{vREC}")
I("s_mov_b64 exec, -1")
I(f"s_add_u32 s{s_cnt}, s{s_cnt}, s{s_tmp}")
L("K3_SLOW_CHK")
I(f"s_cmp_lt_u32 s{s_cnt}, 16")
I("s_cbranch_scc1 K3_SLOW_NEXT")
L("K3_SLOW_PROC")
read_da(s_lb)
I("s_waitcnt lgkmcnt(0)")
issue(s_buf)
I("s_waitcnt vmcnt(0)")
proc1a(None)
I("s_nop 7")
proc1b()
I("s_nop 1")
proc2()
I(f"s_cmp_eq_u32 s{s_tail}, 1")
I("s_cbranch_scc1 K3_FIN")
I(f"v_add_u32 v{vREC}, s{s_lb}, v{vT2}")
I(f"ds_read_b32 v{vREC+1}, v{vREC} offset:64")
I(f"ds_read_b32 v{vREC+2}, v{vREC} offset:320")
I("s_waitcnt lgkmcnt(0)")
I(f"ds_write_b32 v{vREC}, v{vREC+1}")
I(f"ds_write_b32 v{vREC}, v{vREC+2} offset:256")
I(f"s_sub_u32 s{s_cnt}, s{s_cnt}, 16")
I("s_branch K3_SLOW_CHK")
L("K3_SLOW_NEXT")
I(f"s_add_u32 s{s_base}, s{s_base}, 256")
I(f"s_cmp_lt_u32 s{s_base}, {NE*4}")
I("s_cbranch_scc1 K3_SLOW_SCAN")
I(f"v_add_u32 v{vREC}, s{s_lb}, v{vT2}")
I(f"v_mov_b32 v{vREC+1}, s{s_inv}")
I(f"v_cmp_le_u32 vcc, s{s_cnt}, v{vLane}")
I("s_mov_b64 exec, vcc")
I(f"ds_write_b32 v{vREC}, v{vREC+1}")
I("s_mov_b64 exec, -1")
I(f"s_mov_b32 s{s_tail}, 1")
I("s_branch K3_SLOW_PROC")
L("K3_END")
I("s_endpgm")

E('.section .rodata,"a"')
E(".p2align 6")
E(".amdhsa_kernel gat_prep_kernel")
E("  .amdhsa_next_free_vgpr 48")
E("  .amdhsa_next_free_sgpr 48")
E("  .amdhsa_accum_offset 48")
E("  .amdhsa_group_segment_fixed_size 0")
E("  .amdhsa_kernarg_size 72")
E("  .amdhsa_user_sgpr_count 2")
E("  .amdhsa_user_sgpr_kernarg_segment_ptr 1")
E("  .amdhsa_system_sgpr_workgroup_id_x 1")
E(".end_amdhsa_kernel")
E(".p2align 6")
E(f".amdhsa_kernel {KN}")
E("  .amdhsa_next_free_vgpr 256")
E("  .amdhsa_next_free_sgpr 102")
E("  .amdhsa_accum_offset 256")
E("  .amdhsa_group_segment_fixed_size 0")
E("  .amdhsa_kernarg_size 72")
E("  .amdhsa_user_sgpr_count 2")
E("  .amdhsa_user_sgpr_kernarg_segment_ptr 1")
E("  .amdhsa_system_sgpr_workgroup_id_x 1")
E(".end_amdhsa_kernel")

path = sys.argv[1] if len(sys.argv) > 1 else 'standalone__graph_attention_gat__graph.s'
open(path, 'w').write("\n".join(OUT) + "\n")
print("vgprs used:", NV, "lines:", len(OUT))
```

```python
import sys

OUT = []
def E(s=""):
    OUT.append(s)
def I(s):
    OUT.append("    " + s)
def L(s):
    OUT.append(s + ":")

STAMPS = len(sys.argv) > 2 and sys.argv[2] == 'stamps'

N = 10000
NE = 160000
NCHUNK = 64
EPC = 2500
NT = 250
CELLS_BYTES = NCHUNK * NT * 128
WP_OFF = 0x200000
VT_OFF = 0x280000
WS_END = 0x281000
MARK = 0x7FFFFFF7
INV = 0x7FFFFFFF

L_CNT = 0
L_SD = 256
L_V = 2304
L_LIST = 6400
L_STG = L_LIST + 17 * 1024
BUFB = 8448
L_TOTAL = L_STG + 16 * BUFB
L_AGG = L_STG
AGG_STRIDE = 2080
assert L_TOTAL <= 163840 and L_STG % 16 == 0

HEADER = open('standalone__graph_attention_gat__graph.s.ref').read().split('\n')
for ln in HEADER:
    if ln.startswith('; @launch') or ln.startswith('; Override') or ln.startswith('; grid=ceil'):
        continue
    if not ln.startswith(';'):
        break
    E(ln)
E("; @launch kernel=gat_prep_kernel grid=(288,1,1) block=(512,1,1) lds=34816")
E("; @launch kernel=standalone__graph_attention_gat__graph_kernel grid=(250,1,1) block=(512,1,1) lds=%d" % L_TOTAL)
E('.amdgcn_target "amdgcn-amd-amdhsa--gfx950"')
E(".text")

def srd(d, b, nbytes):
    I(f"s_mov_b32 s{d}, s{b}")
    I(f"s_and_b32 s{d+1}, s{b+1}, 0xffff")
    I(f"s_mov_b32 s{d+2}, {nbytes}")
    I(f"s_mov_b32 s{d+3}, 0x00020000")

E(".globl gat_prep_kernel")
E(".p2align 8")
E(".type gat_prep_kernel,@function")
L("gat_prep_kernel")
I("s_cmp_ge_u32 s2, 288")
I("s_cbranch_scc1 K1_END")
I("s_cmp_ge_u32 s2, 160")
I("s_cbranch_scc1 K1_PF")
I("s_load_dwordx4 s[4:7], s[0:1], 8")
I("s_load_dwordx4 s[8:11], s[0:1], 24")
I("s_load_dwordx2 s[12:13], s[0:1], 40")
I("s_load_dwordx2 s[14:15], s[0:1], 64")
I("s_cmp_ge_u32 s2, 128")
I("s_cbranch_scc1 K1_V")
I("s_cmp_ge_u32 s2, 64")
I("s_cbranch_scc1 K1_REPACK")
I("v_lshlrev_b32 v1, 4, v0")
for r in range(2, 6):
    I(f"v_mov_b32 v{r}, {INV}")
for k in range(4):
    I(f"ds_write_b128 v1, v[2:5] offset:{k*8192}")
I("v_lshlrev_b32 v6, 2, v0")
I("v_mov_b32 v7, 0")
I("ds_write_b32 v6, v7 offset:32768")
I(f"s_mul_i32 s28, s2, {EPC*4}")
for j in range(1, 5):
    I(f"s_add_u32 s{28+j}, s28, {j*2000}")
I("v_cmp_gt_u32 vcc, 500, v0")
I("s_waitcnt lgkmcnt(0)")
srd(20, 6, NE * 4)
srd(16, 4, NE * 4)
I("s_and_saveexec_b64 s[34:35], vcc")
for j in range(5):
    I(f"buffer_load_dword v{10+j}, v6, s[20:23], s{28+j} offen")
for j in range(5):
    I(f"buffer_load_dword v{15+j}, v6, s[16:19], s{28+j} offen")
srd(24, 14, CELLS_BYTES)
I("v_mov_b32 v8, 1")
I(f"v_mov_b32 v9, {32768+2044}")
I("s_barrier")
I("s_waitcnt vmcnt(5)")
for j in range(5):
    vD = 10 + j
    vq, vr, vt, vb = 20, 21, 30 + j, 23
    I(f"v_mul_u32_u24 v{vq}, 52429, v{vD}")
    I(f"v_lshrrev_b32 v{vq}, 18, v{vq}")
    I(f"v_mad_i32_i24 v{vr}, v{vq}, -5, v{vD}")
    I(f"v_lshrrev_b32 v{vt}, 3, v{vq}")
    I(f"v_lshlrev_b32 v24, 2, v{vt}")
    I(f"ds_add_rtn_u32 v{35+j}, v24, v8 offset:32768")
    I(f"v_and_b32 v{vb}, 7, v{vq}")
    I(f"v_cmp_lt_u32 vcc, 2, v{vr}")
    I(f"v_lshlrev_b32 v{vb}, 4, v{vb}")
    I(f"v_add_u32 v22, 5, v{vr}")
    I(f"v_cndmask_b32 v{vr}, v{vr}, v22, vcc")
    I(f"v_add_u32 v{vD}, v{vb}, v{vr}")
I("s_waitcnt vmcnt(0)")
for j in range(5):
    I(f"v_lshl_or_b32 v{15+j}, v{15+j}, 9, v{10+j}")
I("s_waitcnt lgkmcnt(0)")
for j in range(5):
    vt, vrank = 30 + j, 35 + j
    I(f"v_cmp_gt_u32 vcc, 32, v{vrank}")
    I(f"v_lshlrev_b32 v{vt}, 7, v{vt}")
    I(f"v_lshl_add_u32 v{vt}, v{vrank}, 2, v{vt}")
    I(f"v_cndmask_b32 v{vt}, v9, v{vt}, vcc")
    I(f"ds_write_b32 v{vt}, v{15+j}")
I("s_mov_b64 exec, s[34:35]")
I("v_lshrrev_b32 v2, 3, v0")
I("v_lshlrev_b32 v2, 2, v2")
I("v_and_b32 v3, 7, v0")
I("v_cmp_eq_u32 s[36:37], 7, v3")
I(f"v_mov_b32 v4, {MARK}")
I(f"s_mul_i32 s28, s2, {NT*128}")
for k in range(3):
    I(f"v_add_u32 v{5+k}, {k*8192}, v1")
I(f"v_add_u32 v8, {3*8192}, v1")
I("s_waitcnt lgkmcnt(0)")
I("s_barrier")
for k in range(4):
    I(f"ds_read_b128 v[{10+4*k}:{13+4*k}], v1 offset:{k*8192}")
    I(f"ds_read_b32 v{30+k}, v2 offset:{32768+k*256}")
I("s_waitcnt lgkmcnt(0)")
for k in range(4):
    I(f"v_cmp_lt_u32 vcc, 32, v{30+k}")
    I("s_and_b64 vcc, vcc, s[36:37]")
    I("s_nop 1")
    I(f"v_cndmask_b32 v{13+4*k}, v{13+4*k}, v4, vcc")
for k in range(3):
    I(f"buffer_store_dwordx4 v[{10+4*k}:{13+4*k}], v{5+k}, s[24:27], s28 offen")
I("v_cmp_gt_u32 vcc, 464, v0")
I("s_and_saveexec_b64 s[34:35], vcc")
I("s_cbranch_execz K1_END")
I("buffer_store_dwordx4 v[22:25], v8, s[24:27], s28 offen")
I("s_branch K1_END")
L("K1_REPACK")
I("v_lshrrev_b32 v1, 6, v0")
I("v_and_b32 v2, 63, v0")
I("v_readfirstlane_b32 s28, v1")
I("s_sub_u32 s29, s2, 64")
I("s_lshl_b32 s29, s29, 3")
I("s_add_u32 s29, s29, s28")
I("s_lshr_b32 s30, s29, 4")
I("s_lshr_b32 s31, s29, 2")
I("s_and_b32 s31, s31, 3")
I("s_and_b32 s32, s29, 3")
I("s_and_b32 s33, s31, 1")
I("s_lshl_b32 s33, s33, 9")
I("s_lshl_b32 s34, s30, 3")
I("s_add_u32 s33, s33, s34")
I("s_lshr_b32 s34, s31, 1")
I("s_lshl_b32 s34, s34, 2")
I("s_add_u32 s33, s33, s34")
I("s_lshl_b32 s33, s33, 9")
I("s_lshl_b32 s34, s32, 7")
I("s_add_u32 s33, s33, s34")
I("s_add_u32 s36, s33, 131072")
I("v_lshlrev_b32 v3, 1, v2")
I("s_waitcnt lgkmcnt(0)")
srd(16, 8, 4 * 256 * 256 * 2)
for i in range(8):
    so = "s33" if i < 4 else "s36"
    I(f"buffer_load_ushort v{10+i}, v3, s[16:19], {so} offen offset:{(i&3)*512}")
srd(24, 14, WS_END)
I("s_lshl_b32 s34, s32, 6")
I("s_add_u32 s34, s34, s30")
I("s_lshl_b32 s34, s34, 11")
I("s_lshl_b32 s35, s31, 8")
I("s_add_u32 s34, s34, s35")
I(f"s_add_u32 s34, s34, {WP_OFF}")
I("v_lshrrev_b32 v4, 5, v2")
I("v_lshlrev_b32 v4, 16, v4")
I("v_bfe_u32 v5, v2, 2, 1")
I("v_lshl_or_b32 v4, v5, 10, v4")
I("v_bfe_u32 v5, v2, 3, 2")
I("v_lshl_or_b32 v4, v5, 6, v4")
I("v_and_b32 v5, 3, v2")
I("v_lshl_or_b32 v4, v5, 4, v4")
I("s_waitcnt vmcnt(0)")
for i in range(4):
    I(f"v_lshl_or_b32 v{20+i}, v{11+2*i}, 16, v{10+2*i}")
I("buffer_store_dwordx4 v[20:23], v4, s[24:27], s34 offen")
I("s_branch K1_END")
L("K1_V")
I("v_lshrrev_b32 v1, 4, v0")
I("v_and_b32 v2, 15, v0")
I("s_sub_u32 s29, s2, 128")
I("s_lshl_b32 s29, s29, 5")
I("v_add_u32 v1, s29, v1")
I("v_lshlrev_b32 v3, 9, v1")
I("v_lshl_add_u32 v3, v2, 5, v3")
I("v_lshrrev_b32 v4, 8, v1")
I("v_lshlrev_b32 v4, 9, v4")
I("v_lshl_add_u32 v4, v2, 5, v4")
I("s_waitcnt lgkmcnt(0)")
srd(16, 8, 4 * 256 * 256 * 2)
srd(20, 10, 2048)
srd(28, 12, 2048)
srd(24, 14, WS_END)
I("buffer_load_dwordx4 v[8:11], v3, s[16:19], 0 offen")
I("buffer_load_dwordx4 v[12:15], v3, s[16:19], 0 offen offset:16")
I("buffer_load_dwordx4 v[16:19], v4, s[20:23], 0 offen")
I("buffer_load_dwordx4 v[20:23], v4, s[20:23], 0 offen offset:16")
I("buffer_load_dwordx4 v[24:27], v4, s[28:31], 0 offen")
I("buffer_load_dwordx4 v[28:31], v4, s[28:31], 0 offen offset:16")
I("v_mov_b32 v32, 0")
I("v_mov_b32 v33, 0")
I("s_waitcnt vmcnt(0)")
for i in range(8):
    I(f"v_lshlrev_b32 v34, 16, v{8+i}")
    I(f"v_and_b32 v35, 0xffff0000, v{8+i}")
    I(f"v_lshlrev_b32 v36, 16, v{16+i}")
    I(f"v_and_b32 v37, 0xffff0000, v{16+i}")
    I(f"v_lshlrev_b32 v38, 16, v{24+i}")
    I(f"v_and_b32 v39, 0xffff0000, v{24+i}")
    I("v_fmac_f32 v32, v34, v36")
    I("v_fmac_f32 v33, v34, v38")
    I("v_fmac_f32 v32, v35, v37")
    I("v_fmac_f32 v33, v35, v39")
for mod in ["quad_perm:[1,0,3,2]", "quad_perm:[2,3,0,1]", "row_half_mirror", "row_mirror"]:
    I("s_nop 1")
    I(f"v_add_f32_dpp v32, v32, v32 {mod} row_mask:0xf bank_mask:0xf")
    I(f"v_add_f32_dpp v33, v33, v33 {mod} row_mask:0xf bank_mask:0xf")
I("v_cmp_eq_u32 vcc, 0, v2")
I("s_nop 1")
I("v_cndmask_b32 v32, v33, v32, vcc")
I("v_mul_f32 v32, 0x3fb8aa3b, v32")
I("v_cvt_pk_bf16_f32 v32, v32, v32")
I("v_lshlrev_b32 v5, 1, v1")
I("v_lshl_add_u32 v5, v2, 11, v5")
I(f"v_add_u32 v5, {VT_OFF}, v5")
I("v_cmp_gt_u32 vcc, 2, v2")
I("s_and_saveexec_b64 s[34:35], vcc")
I("s_cbranch_execz K1_END")
I("buffer_store_short v32, v5, s[24:27], 0 offen")
I("s_branch K1_END")
L("K1_PF")
I("s_load_dwordx2 s[4:5], s[0:1], 0")
I("v_lshlrev_b32 v1, 4, v0")
I("s_sub_u32 s29, s2, 160")
I("s_mul_i32 s29, s29, 40960")
I("s_waitcnt lgkmcnt(0)")
srd(16, 4, N * 512)
for i in range(5):
    I(f"buffer_load_dwordx4 v[{4+4*(i%8)}:{7+4*(i%8)}], v1, s[16:19], s29 offen")
    I("s_add_u32 s29, s29, 8192")
I("s_waitcnt vmcnt(0)")
L("K1_END")
I("s_endpgm")

KN = "standalone__graph_attention_gat__graph_kernel"
E(f".globl {KN}")
E(".p2align 8")
E(f".type {KN},@function")

class Alloc:
    def __init__(self, start, limit):
        self.n = start
        self.limit = limit
    def __call__(self, cnt, align=1):
        self.n = (self.n + align - 1) // align * align
        r = self.n
        self.n += cnt
        assert self.n <= self.limit, ("reg overflow", self.n)
        return r

va = Alloc(1, 256)
vC16 = va(1); vG = va(1); vLane = va(1)
vAS0 = va(1); vAT0 = va(1); vAS = va(1); vAT = va(1); vAR0 = va(1); vAD0 = va(1); vLoff = va(1)
vKEY = va(1); vSD1 = va(1); vWoff = va(1)
vT2 = va(1); vT3 = va(1)
vT0 = va(2, 2); vT1 = vT0 + 1
vP = va(2, 2)
vONE = va(2, 2)
vSDq = va(4, 4)
vDEN = va(4, 4)
vACC = va(64, 4)
vH0 = va(32, 4)
vVS = va(32, 4)
vPOOL = va(64, 4)
vDA = va(8, 4)
vREC = va(4, 4)
vS = va(4, 4)
vU = va(4, 4)
NV = va.n

sX = 16; sWS = 20; sOUT = 24; sSRC = 28; sDST = 32
s_wv = 36; s_lb = 37; s_n0 = 38; s_n1 = 39
s_pl = 41; s_prem = 42; s_psub = 43; s_il = 44; s_irem = 45
s_buf = 47; s_bufx = 46; s_ahead = 48; s_mode = 49; s_mask = 50; s_tmp = 51; s_tmp2 = 52
s_node0 = 53; s_nn = 54; s_keyhi = 55; s_cnt = 56; s_base = 57; s_tail = 58
s_first = 60; s_inv = 62; s_tmp3 = 63
sM = 64
sMA = 80
sMB = 14
s_wo = 82
s_st = 83

def stamp(i):
    if STAMPS:
        I("s_memtime s[98:99]")
        I("s_waitcnt lgkmcnt(0)")
        I(f"s_mov_b32 s{s_st+i}, s98")
def v4(r): return f"v[{r}:{r+3}]"

L(KN)
I(f"s_cmp_ge_u32 s2, {NT}")
I("s_cbranch_scc1 K3_END")
stamp(0)
if STAMPS:
    I("s_memrealtime s[98:99]")
    I("s_waitcnt lgkmcnt(0)")
    I(f"s_mov_b32 s{s_st+14}, s98")
I("s_load_dwordx2 s[12:13], s[0:1], 64")
I("s_load_dwordx4 s[4:7], s[0:1], 0")
I("s_load_dwordx2 s[8:9], s[0:1], 16")
I("s_load_dwordx2 s[10:11], s[0:1], 48")
I(f"v_lshrrev_b32 v{vT0}, 6, v0")
I(f"v_and_b32 v{vLane}, 63, v0")
I(f"v_and_b32 v{vC16}, 15, v0")
I(f"v_readfirstlane_b32 s{s_wv}, v{vT0}")
I(f"v_bfe_u32 v{vG}, v0, 4, 2")
I(f"v_lshlrev_b32 v{vT1}, 4, v0")
I(f"s_mov_b32 s{s_inv}, {INV}")
for r in range(4):
    I(f"v_mov_b32 v{vSDq+r}, s{s_inv}")
for k in range(2):
    I(f"ds_write_b128 v{vT1}, {v4(vSDq)} offset:{L_LIST + k*8192}")
I(f"v_lshlrev_b32 v{vT2}, 2, v{vLane}")
I(f"v_mov_b32 v{vT0}, 0")
I(f"ds_write_b32 v{vT2}, v{vT0} offset:{L_CNT}")
vC = vDA
I(f"v_lshrrev_b32 v{vT0}, 3, v0")
I(f"v_mul_u32_u24 v{vT0}, {NT*128}, v{vT0}")
I(f"v_and_b32 v{vT2}, 7, v0")
I(f"v_lshl_add_u32 v{vT0}, v{vT2}, 4, v{vT0}")
I(f"s_lshl_b32 s{s_tmp}, s2, 7")
I(f"v_lshlrev_b32 v{vT2}, 3, v0")
I(f"s_mov_b32 s{s_cnt}, {VT_OFF}")
I("s_waitcnt lgkmcnt(0)")
srd(sWS, 12, WS_END)
I(f"buffer_load_dwordx4 {v4(vC)}, v{vT0}, s[{sWS}:{sWS+3}], s{s_tmp} offen")
I(f"buffer_load_dwordx2 v[{vS}:{vS+1}], v{vT2}, s[{sWS}:{sWS+3}], s{s_cnt} offen")
srd(sX, 4, N * 512)
def rows_load():
    I(f"s_mul_i32 s{s_node0}, s2, 40")
    I(f"s_mul_i32 s{s_tmp2}, s{s_wv}, 5")
    I(f"s_add_u32 s{s_node0}, s{s_node0}, s{s_tmp2}")
    I(f"s_lshl_b32 s{s_tmp2}, s{s_node0}, 9")
    I(f"v_min_u32 v{vT1}, 4, v{vC16}")
    I(f"v_lshlrev_b32 v{vT1}, 9, v{vT1}")
    I(f"v_lshl_add_u32 v{vT1}, v{vG}, 4, v{vT1}")
    for ks in range(8):
        I(f"buffer_load_dwordx4 {v4(vPOOL+4*ks)}, v{vT1}, s[{sX}:{sX+3}], s{s_tmp2} offen offset:{ks*64}")

I("s_barrier")
stamp(1)
rows_load()
I(f"s_mul_i32 s{s_buf}, s{s_wv}, {2*BUFB}")
I(f"s_add_u32 s{s_buf}, s{s_buf}, {L_STG}")
I(f"s_add_u32 s{s_tmp}, s{s_buf}, {BUFB}")
I(f"s_xor_b32 s{s_bufx}, s{s_buf}, s{s_tmp}")
I(f"v_and_b32 v{vT0}, 7, v{vC16}")
I(f"v_mul_u32_u24 v{vAS0}, 1056, v{vT0}")
I(f"v_lshrrev_b32 v{vT0}, 3, v{vC16}")
I(f"v_lshl_add_u32 v{vAS0}, v{vT0}, 9, v{vAS0}")
I(f"v_lshl_add_u32 v{vAS0}, v{vG}, 4, v{vAS0}")
I(f"v_bfe_u32 v{vT0}, v{vLane}, 2, 3")
I(f"v_mul_u32_u24 v{vAT0}, 1056, v{vT0}")
I(f"v_lshrrev_b32 v{vT0}, 5, v{vLane}")
I(f"v_lshl_add_u32 v{vAT0}, v{vT0}, 9, v{vAT0}")
I(f"v_lshlrev_b32 v{vAD0}, 5, v{vT0}")
I(f"v_and_b32 v{vT0}, 3, v{vLane}")
I(f"v_lshl_add_u32 v{vAT0}, v{vT0}, 3, v{vAT0}")
I(f"v_lshlrev_b32 v{vAR0}, 4, v{vG}")
I(f"v_and_b32 v{vT0}, 31, v{vLane}")
I(f"v_lshlrev_b32 v{vLoff}, 4, v{vT0}")
I(f"v_lshlrev_b32 v{vWoff}, 4, v{vLane}")
I(f"s_lshl_b32 s{s_tmp}, s{s_wv}, 16")
I(f"s_add_u32 s{s_wo}, s{s_tmp}, {WP_OFF}")
I(f"s_mov_b32 s{s_mask}, 0xfffffe00")
for r in range(2):
    I(f"v_mov_b32 v{vONE+r}, 0x3f803f80")
I(f"s_lshl_b32 s{s_lb}, s{s_wv}, 11")
I(f"s_add_u32 s{s_lb}, s{s_lb}, {L_LIST}")
I(f"s_mov_b32 s{s_psub}, 0")
I(f"s_mov_b32 s{s_mode}, 0")
I(f"s_mov_b32 s{s_first}, 1")
I(f"v_cmp_gt_u32 s[{sMA}:{sMA+1}], 12, v{vC16}")
I(f"v_cmp_gt_u32 s[{sMB}:{sMB+1}], 8, v{vC16}")
I(f"v_mov_b32 v{vT0}, 1")
I(f"s_waitcnt vmcnt(9)")
stamp(2)
vA8 = vH0
vP8 = vH0 + 4
for k in range(4):
    I(f"v_cmp_ne_u32 s[{sM+2*k}:{sM+2*k+1}], s{s_inv}, v{vC+k}")
    I(f"v_bfe_u32 v{vA8+k}, v{vC+k}, 3, 5")
    I(f"v_lshlrev_b32 v{vA8+k}, 2, v{vA8+k}")
for k in range(4):
    I(f"s_mov_b64 exec, s[{sM+2*k}:{sM+2*k+1}]")
    I(f"ds_add_rtn_u32 v{vP8+k}, v{vA8+k}, v{vT0} offset:{L_CNT}")
I("s_mov_b64 exec, -1")
for k in range(4):
    I(f"v_min_u32 v{vA8+k}, 64, v{vA8+k}")
I("s_waitcnt vmcnt(8)")
I(f"ds_write_b64 v{vT2}, v[{vS}:{vS+1}] offset:{L_V}")
I("s_waitcnt lgkmcnt(1)")
for k in range(4):
    I(f"v_min_u32 v{vP8+k}, 255, v{vP8+k}")
    I(f"v_lshlrev_b32 v{vP8+k}, 2, v{vP8+k}")
    I(f"v_lshl_add_u32 v{vP8+k}, v{vA8+k}, 8, v{vP8+k}")
for k in range(4):
    I(f"s_mov_b64 exec, s[{sM+2*k}:{sM+2*k+1}]")
    I(f"ds_write_b32 v{vP8+k}, v{vC+k} offset:{L_LIST}")
I("s_mov_b64 exec, -1")
I(f"v_and_b32 v{vT1}, 31, v{vLane}")
I(f"v_lshlrev_b32 v{vT3}, 2, v{vT1}")
I(f"v_mov_b32 v{vT2}, 256")
I(f"v_cmp_eq_u32 vcc, 30, v{vT1}")
I(f"v_cmp_gt_u32 s[{sM}:{sM+1}], 16, v{vT1}")
I(f"s_lshl_b32 s{s_tmp}, s{s_wv}, 1")
I(f"v_cndmask_b32 v{vT2}, v{vT2}, 0, vcc")
I(f"s_or_b64 s[{sM}:{sM+1}], s[{sM}:{sM+1}], vcc")
I(f"s_add_u32 s{s_tmp2}, s{s_tmp}, 1")
I(f"v_add_u32 v{vT1}, s{s_lb}, v{vAD0}")
I("s_waitcnt lgkmcnt(0)")
I("s_barrier")
stamp(3)
I(f"ds_read_b32 v{vT0}, v{vT3} offset:{L_CNT}")
for q in range(2):
    I(f"ds_read_b128 {v4(vDA+4*q)}, v{vT1} offset:{q*16}")
I("s_waitcnt lgkmcnt(2)")
I(f"v_cmp_gt_u32 vcc, v{vT0}, v{vT2}")
I(f"v_readlane_b32 s{s_n0}, v{vT0}, s{s_tmp}")
I(f"v_readlane_b32 s{s_n1}, v{vT0}, s{s_tmp2}")
I(f"s_and_b64 vcc, vcc, s[{sM}:{sM+1}]")
I("s_cbranch_vccnz K3_SLOW")
for s in (s_n0, s_n1):
    I(f"s_add_u32 s{s}, s{s}, 15")
    I(f"s_lshr_b32 s{s}, s{s}, 4")
    I(f"s_max_u32 s{s}, s{s}, 1")
I(f"s_mov_b32 s{s_pl}, s{s_lb}")
I(f"s_mov_b32 s{s_prem}, s{s_n0}")
I(f"s_mov_b32 s{s_il}, s{s_lb}")
I(f"s_add_u32 s{s_irem}, s{s_n0}, s{s_n1}")

_uid = [0]
def uid(p):
    _uid[0] += 1
    return f"{p}_{_uid[0]}"

def read_da(s_list):
    I(f"v_add_u32 v{vT1}, s{s_list}, v{vAD0}")
    for q in range(2):
        I(f"ds_read_b128 {v4(vDA+4*q)}, v{vT1} offset:{q*16}")

def issue(sb):
    I(f"s_mov_b32 m0, s{sb}")
    for i in range(8):
        I(f"v_and_or_b32 v{vDA+i}, v{vDA+i}, s{s_mask}, v{vLoff}")
        I(f"buffer_load_dwordx4 v{vDA+i}, s[{sX}:{sX+3}], 0 offen lds")
        if i < 7:
            I("s_add_u32 m0, m0, 1056")

def advance_issue():
    I(f"s_add_u32 s{s_il}, s{s_il}, 64")
    I(f"s_sub_u32 s{s_irem}, s{s_irem}, 1")
    I(f"s_add_u32 s{s_tmp}, s{s_lb}, 1024")
    I(f"s_cmp_eq_u32 s{s_irem}, s{s_n1}")
    I(f"s_cselect_b32 s{s_il}, s{s_tmp}, s{s_il}")

vTR = vPOOL + 32
def proc1a(s_list_next):
    I(f"v_add_u32 v{vAS}, s{s_buf}, v{vAS0}")
    I(f"v_add_u32 v{vAT}, s{s_buf}, v{vAT0}")
    I(f"v_add_u32 v{vT0}, s{s_pl}, v{vAR0}")
    for ks in range(8):
        I(f"ds_read_b128 {v4(vPOOL+4*ks)}, v{vAS} offset:{ks*64}")
    I(f"ds_read_b128 {v4(vREC)}, v{vT0}")
    nlater = 1
    if s_list_next is not None:
        read_da(s_list_next)
        nlater += 2
    for j in range(16):
        I(f"ds_read_b64_tr_b16 v[{vTR+2*j}:{vTR+2*j+1}], v{vAT} offset:{j*32}")
    I("s_waitcnt lgkmcnt(15)")
    for ks in range(8):
        c = v4(vSDq) if ks == 0 else v4(vS)
        I(f"v_mfma_f32_16x16x32_bf16 {v4(vS)}, {v4(vPOOL+4*ks)}, {v4(vVS+4*ks)}, {c}")
    for k in range(4):
        I(f"v_cmp_eq_u32_sdwa s[{sM+2*k}:{sM+2*k+1}], v{vREC+k}, v{vKEY} src0_sel:BYTE_0 src1_sel:DWORD")
    I("s_waitcnt lgkmcnt(0)")

def v2(r): return f"v[{r}:{r+1}]"
def pbuild_list():
    l = []
    for k in range(4):
        l.append(f"v_mul_f32 v{vU+k}, 0x3e4ccccd, v{vS+k}")
    for k in range(4):
        l.append(f"v_max_f32 v{vU+k}, v{vS+k}, v{vU+k}")
    for k in range(4):
        l.append(f"v_exp_f32 v{vU+k}, v{vU+k}")
    for k in range(4):
        l.append(f"v_cndmask_b32 v{vU+k}, 0, v{vU+k}, s[{sM+2*k}:{sM+2*k+1}]")
    for k in range(2):
        l.append(f"v_cvt_pk_bf16_f32 v{vP+k}, v{vU+2*k}, v{vU+2*k+1}")
    l.append("s_nop 1")
    return l

def agg_list(first):
    l = []
    c = "0" if first else v4(vDEN)
    l.append(f"v_mfma_f32_16x16x16_bf16 {v4(vDEN)}, {v2(vONE)}, {v2(vP)}, {c}")
    for j in range(16):
        c = "0" if first else v4(vACC+4*j)
        l.append(f"v_mfma_f32_16x16x16_bf16 {v4(vACC+4*j)}, {v2(vTR+2*j)}, {v2(vP)}, {c}")
    return l

def dma_triplet(i, sb):
    t = []
    t.append(f"s_mov_b32 m0, s{sb}" if i == 0 else "s_add_u32 m0, m0, 1056")
    t.append(f"v_and_or_b32 v{vDA+i}, v{vDA+i}, s{s_mask}, v{vLoff}")
    t.append(f"buffer_load_dwordx4 v{vDA+i}, s[{sX}:{sX+3}], 0 offen lds")
    return t

def body(first, with_dma):
    l = pbuild_list() + agg_list(first)
    if with_dma:
        pos = [0, 6, 12, 19, 22, 25, 28, 31]
        out = []
        k = 0
        for idx, ins in enumerate(l):
            if k < 8 and idx == pos[k]:
                out += dma_triplet(k, s_buf)
                k += 1
            out.append(ins)
        assert k == 8
        l = out
    else:
        l = ["s_nop 3"] + l
    for ins in l:
        I(ins)

def proc_tail(allow_dma):
    u = uid("PT")
    if allow_dma:
        I(f"s_cmp_eq_u32 s{s_irem}, 0")
        I(f"s_cbranch_scc1 {u}_N")
        I(f"s_cmp_eq_u32 s{s_first}, 1")
        I(f"s_cbranch_scc1 {u}_DF")
        body(False, True)
        I(f"s_branch {u}_A")
        L(f"{u}_DF")
        body(True, True)
        L(f"{u}_A")
        advance_issue()
        I(f"s_add_u32 s{s_ahead}, s{s_ahead}, 1")
        I(f"s_branch {u}_E")
        L(f"{u}_N")
    I(f"s_cmp_eq_u32 s{s_first}, 1")
    I(f"s_cbranch_scc1 {u}_NF")
    body(False, False)
    I(f"s_branch {u}_E")
    L(f"{u}_NF")
    body(True, False)
    L(f"{u}_E")
    I(f"s_mov_b32 s{s_first}, 0")

def sdst(with_c1):
    l = []
    A = l.append
    A(f"v_and_b32 v{vT2}, 3, v{vC16}")
    A(f"v_lshlrev_b32 v{vT3}, 9, v{vT2}")
    A(f"v_lshl_add_u32 v{vT3}, v{vG}, 4, v{vT3}")
    for ks in range(8):
        A(f"ds_read_b128 {v4(vPOOL+32+4*ks)}, v{vT3} offset:{L_V+2048+ks*64}")
    for ks in range(8):
        A(f"ds_read_b128 {v4(vVS+4*ks)}, v{vT3} offset:{L_V+ks*64}")
    A("D")
    A(f"s_lshl_b32 s{s_tmp}, s{s_wv}, 8")
    A(f"v_lshlrev_b32 v{vT2}, 6, v{vT2}")
    A(f"v_add_u32 v{vT2}, s{s_tmp}, v{vT2}")
    A(f"v_lshl_add_u32 v{vT3}, v{vG}, 4, v{vT2}")
    A("D")
    A(f"v_lshrrev_b32 v{vKEY}, 2, v{vC16}")
    A(f"v_lshl_add_u32 v{vT2}, v{vKEY}, 2, v{vT2}")
    A(f"v_cmp_gt_u32 s[{sM}:{sM+1}], 4, v{vC16}")
    A(f"s_lshl_b32 s{s_tmp}, s{s_wv}, 4")
    A(f"v_add_u32 v{vKEY}, s{s_tmp}, v{vKEY}")
    A("D")
    A("W")
    for ks in range(8):
        c = "0" if ks == 0 else v4(vS)
        A(f"v_mfma_f32_16x16x32_bf16 {v4(vS)}, {v4(vPOOL+4*ks)}, {v4(vPOOL+32+4*ks)}, {c}")
        if ks % 2 == 1:
            A("D")
    A("D")
    A("s_nop 7")
    A(f"s_mov_b64 exec, s[{sM}:{sM+1}]")
    A(f"ds_write_b128 v{vT3}, {v4(vS)} offset:{L_SD}")
    A("s_mov_b64 exec, -1")
    A(f"ds_read_b32 v{vSDq}, v{vT2} offset:{L_SD}")
    A(f"ds_read_b32 v{vSD1}, v{vT2} offset:{L_SD+12}")
    A("s_waitcnt lgkmcnt(0)")
    for r in range(1, 4):
        A(f"v_mov_b32 v{vSDq+r}, v{vSDq}")
    k = 0
    for ins in l:
        if ins == "D":
            if with_c1:
                for t in dma_triplet(k, s_tmp2):
                    I(t)
                k += 1
        elif ins == "W":
            if with_c1:
                I(f"s_waitcnt vmcnt({8 + k}) lgkmcnt(8)")
            else:
                I("s_waitcnt lgkmcnt(8)")
        else:
            I(ins)
    assert (not with_c1) or k == 8

I("s_waitcnt lgkmcnt(0)")
issue(s_buf)
advance_issue()
read_da(s_il)
I(f"s_xor_b32 s{s_tmp2}, s{s_buf}, s{s_bufx}")
I("s_waitcnt lgkmcnt(0)")
sdst(True)
advance_issue()
I(f"s_mov_b32 s{s_ahead}, 2")
stamp(4)
stamp(5)

L("K3_LOOP")
I(f"s_cmp_ge_u32 s{s_ahead}, 2")
I("s_cbranch_scc1 K3_W8")
I("s_waitcnt vmcnt(0)")
L("K3_W8")
I("s_waitcnt vmcnt(8)")
proc1a(s_il)
proc_tail(True)
I(f"s_sub_u32 s{s_ahead}, s{s_ahead}, 1")
I(f"s_xor_b32 s{s_buf}, s{s_buf}, s{s_bufx}")
I(f"s_add_u32 s{s_pl}, s{s_pl}, 64")
I(f"s_sub_u32 s{s_prem}, s{s_prem}, 1")
I(f"s_cmp_lg_u32 s{s_prem}, 0")
I("s_cbranch_scc1 K3_LOOP")
L("K3_FIN")
I(f"s_cmp_eq_u32 s{s_psub}, 1")
I("s_cbranch_scc1 K3_F1")

NRING = 8
def wload(ks, slot):
    if ks % 2 == 0:
        I(f"s_add_u32 s{s_tmp3}, s{s_wo}, {ks*2048}")
    for j in range(2):
        I(f"buffer_load_dwordx4 {v4(vPOOL + 8*slot + 4*j)}, v{vWoff}, s[{sWS}:{sWS+3}], s{s_tmp3} offen offset:{(ks%2)*2048 + j*1024}")

def finalize(sub):
    I(f"v_add_f32 v{vT0}, 0x3089705f, v{vDEN}")
    I(f"v_rcp_f32 v{vT0}, v{vT0}")
    I("s_nop 0")
    I(f"v_mul_f32 v{vT0}, 0.25, v{vT0}")
    if sub == 0:
        for r in range(4):
            I(f"v_mov_b32 v{vSDq+r}, v{vSD1}")
        I(f"v_add_u32 v{vKEY}, 8, v{vKEY}")
        I(f"s_mov_b32 s{s_psub}, 1")
        I(f"s_add_u32 s{s_pl}, s{s_lb}, 1024")
        I(f"s_mov_b32 s{s_prem}, s{s_n1}")
        I(f"s_mov_b32 s{s_first}, 1")
    else:
        I("s_nop 7")
    for j in range(16):
        d = vH0 + 2*j if sub == 0 else vACC + 4*j
        a = vACC + 4*j
        I(f"v_pk_mul_f32 v[{a}:{a+1}], v[{a}:{a+1}], v[{vT0}:{vT0+1}] op_sel_hi:[1,0]")
        I(f"v_pk_mul_f32 v[{a+2}:{a+3}], v[{a+2}:{a+3}], v[{vT0}:{vT0+1}] op_sel_hi:[1,0]")
        I(f"v_cvt_pk_bf16_f32 v{d}, v{a}, v{a+1}")
        I(f"v_cvt_pk_bf16_f32 v{d+1}, v{a+2}, v{a+3}")
    if sub == 0:
        I(f"s_cmp_eq_u32 s{s_mode}, 0")
        I("s_cbranch_scc1 K3_LOOP")
        I("s_branch K3_SLOW_SUB")

L("K3_F0")
stamp(6)
finalize(0)
L("K3_F1")
stamp(8)
for ks in range(NRING):
    wload(ks, ks)
finalize(1)
I(f"v_lshrrev_b32 v{vT0}, 2, v{vC16}")
I(f"s_mul_i32 s{s_tmp}, s{s_wv}, 5")
I(f"v_add_u32 v{vT1}, s{s_tmp}, v{vT0}")
I(f"v_mul_u32_u24 v{vT1}, {AGG_STRIDE}, v{vT1}")
I(f"v_and_b32 v{vT2}, 3, v{vC16}")
I(f"v_lshl_add_u32 v{vT1}, v{vT2}, 3, v{vT1}")
I(f"v_lshl_add_u32 v{vT1}, v{vG}, 5, v{vT1}")
I(f"v_add_u32 v{vT1}, {L_AGG}, v{vT1}")
I(f"v_mul_u32_u24 v{vAS}, {AGG_STRIDE}, v{vC16}")
I(f"v_lshl_add_u32 v{vAS}, v{vG}, 4, v{vAS}")
I(f"v_add_u32 v{vAS}, {L_AGG}, v{vAS}")
I(f"v_add_u32 v{vAT}, {32*AGG_STRIDE}, v{vAS}")
srd(sOUT, 10, N * 512)
I("s_barrier")
stamp(9)
I(f"s_mov_b64 exec, s[{sMA}:{sMA+1}]")
for j in range(16):
    I(f"ds_write_b64 v{vT1}, v[{vH0+2*j}:{vH0+2*j+1}] offset:{j*128}")
I(f"s_mov_b64 exec, s[{sMB}:{sMB+1}]")
for j in range(16):
    I(f"ds_write_b64 v{vT1}, v[{vACC+4*j}:{vACC+4*j+1}] offset:{3*AGG_STRIDE+j*128}")
I("s_mov_b64 exec, -1")
I("s_waitcnt lgkmcnt(0)")
I("s_barrier")
stamp(10)
vO = vH0
vB = vACC
def bread(ks, slot):
    base = vB + 12*slot
    I(f"ds_read_b128 {v4(base)}, v{vAS} offset:{ks*64}")
    I(f"ds_read_b128 {v4(base+4)}, v{vAS} offset:{16*AGG_STRIDE+ks*64}")
    I(f"ds_read_b128 {v4(base+8)}, v{vAT} offset:{ks*64}")
bread(0, 0)
for ks in range(32):
    if ks + 1 < 32:
        bread(ks + 1, (ks + 1) & 1)
    n_v = 2 * (min(32, ks + NRING) - ks - 1)
    I(f"s_waitcnt vmcnt({n_v}) lgkmcnt({3 if ks + 1 < 32 else 0})")
    for j in range(2):
        w = v4(vPOOL + 8*(ks % NRING) + 4*j)
        for G in range(3):
            o = vO + 8*G + 4*j
            c = "0" if ks == 0 else v4(o)
            I(f"v_mfma_f32_16x16x32_bf16 {v4(o)}, {w}, {v4(vB + 12*(ks&1) + 4*G)}, {c}")
    if ks + NRING < 32:
        wload(ks + NRING, ks % NRING)
stamp(11)
I(f"s_mul_i32 s{s_tmp}, s2, {40*512}")
I(f"s_lshl_b32 s{s_tmp2}, s{s_wv}, 6")
I(f"s_add_u32 s{s_tmp}, s{s_tmp}, s{s_tmp2}")
I(f"v_lshlrev_b32 v{vT0}, 9, v{vC16}")
I(f"v_lshl_add_u32 v{vT0}, v{vG}, 4, v{vT0}")
I(f"v_add_u32 v{vT1}, {16*512}, v{vT0}")
I(f"v_add_u32 v{vT2}, {32*512}, v{vT0}")
I("s_nop 4")
for G in range(3):
    pk = vACC + 32 + 4*G
    for j in range(2):
        o = vO + 8*G + 4*j
        I(f"v_cvt_pk_bf16_f32 v{pk+2*j}, v{o}, v{o+1}")
        I(f"v_cvt_pk_bf16_f32 v{pk+2*j+1}, v{o+2}, v{o+3}")
    va_ = (vT0, vT1, vT2)[G]
    if G == 2:
        I(f"s_mov_b64 exec, s[{sMB}:{sMB+1}]")
    I(f"buffer_store_dwordx4 {v4(pk)}, v{va_}, s[{sOUT}:{sOUT+3}], s{s_tmp} offen")
if STAMPS:
    I("s_mov_b64 exec, -1")
    I("s_waitcnt vmcnt(0)")
    stamp(12)
    I("s_memrealtime s[98:99]")
    I("s_waitcnt lgkmcnt(0)")
    I(f"s_mov_b32 s{s_st+13}, s98")
    I(f"s_mov_b32 s{s_st+7}, s{s_st+6}")
    I(f"s_mov_b32 s{sWS+2}, 0x400000")
    I(f"s_lshl_b32 s{s_tmp}, s2, 3")
    I(f"s_add_u32 s{s_tmp}, s{s_tmp}, s{s_wv}")
    I(f"s_lshl_b32 s{s_tmp}, s{s_tmp}, 7")
    I(f"s_add_u32 s{s_tmp}, s{s_tmp}, 0x300000")
    I(f"v_mov_b32 v{vT0}, 0")
    for i in range(15):
        I(f"v_mov_b32 v{vT1}, s{s_st+i}")
        I(f"buffer_store_dword v{vT1}, v{vT0}, s[{sWS}:{sWS+3}], s{s_tmp} offen offset:{4*i}")
        I("s_nop 1")
I("s_branch K3_END")

L("K3_SLOW")
I(f"s_mov_b32 s{s_mode}, 1")
srd(sSRC, 6, NE * 4)
srd(sDST, 8, NE * 4)
I("s_waitcnt vmcnt(0) lgkmcnt(0)")
sdst(False)
L("K3_SLOW_SUB")
I(f"s_mul_i32 s{s_node0}, s2, 40")
I(f"s_mul_i32 s{s_tmp}, s{s_wv}, 5")
I(f"s_add_u32 s{s_node0}, s{s_node0}, s{s_tmp}")
I(f"s_mul_i32 s{s_tmp}, s{s_psub}, 3")
I(f"s_add_u32 s{s_node0}, s{s_node0}, s{s_tmp}")
I(f"s_sub_u32 s{s_nn}, 3, s{s_psub}")
I(f"s_lshl_b32 s{s_keyhi}, s{s_wv}, 1")
I(f"s_add_u32 s{s_keyhi}, s{s_keyhi}, s{s_psub}")
I(f"s_lshl_b32 s{s_keyhi}, s{s_keyhi}, 3")
I(f"s_mov_b32 s{s_cnt}, 0")
I(f"s_mov_b32 s{s_base}, 0")
I(f"s_mov_b32 s{s_tail}, 0")
I(f"s_mov_b32 s{s_pl}, s{s_lb}")
I(f"v_lshlrev_b32 v{vT2}, 2, v{vLane}")
L("K3_SLOW_SCAN")
I(f"buffer_load_dword v{vREC}, v{vT2}, s[{sDST}:{sDST+3}], s{s_base} offen")
I(f"buffer_load_dword v{vREC+1}, v{vT2}, s[{sSRC}:{sSRC+3}], s{s_base} offen")
I("s_waitcnt vmcnt(0)")
I(f"v_subrev_u32 v{vREC}, s{s_node0}, v{vREC}")
I(f"v_cmp_gt_u32 vcc, s{s_nn}, v{vREC}")
I("s_nop 1")
I("s_cbranch_vccz K3_SLOW_NEXT")
I(f"v_mbcnt_lo_u32_b32 v{vREC+2}, vcc_lo, 0")
I(f"v_mbcnt_hi_u32_b32 v{vREC+2}, vcc_hi, v{vREC+2}")
I(f"v_add_u32 v{vREC+2}, s{s_cnt}, v{vREC+2}")
I(f"v_lshlrev_b32 v{vREC+2}, 2, v{vREC+2}")
I(f"v_add_u32 v{vREC+2}, s{s_lb}, v{vREC+2}")
I(f"v_or_b32 v{vREC}, s{s_keyhi}, v{vREC}")
I(f"v_lshl_or_b32 v{vREC}, v{vREC+1}, 9, v{vREC}")
I(f"s_bcnt1_i32_b64 s{s_tmp}, vcc")
I("s_mov_b64 exec, vcc")
I(f"ds_write_b32 v{vREC+2}, v{vREC}")
I("s_mov_b64 exec, -1")
I(f"s_add_u32 s{s_cnt}, s{s_cnt}, s{s_tmp}")
L("K3_SLOW_CHK")
I(f"s_cmp_lt_u32 s{s_cnt}, 16")
I("s_cbranch_scc1 K3_SLOW_NEXT")
L("K3_SLOW_PROC")
read_da(s_lb)
I("s_waitcnt lgkmcnt(0)")
issue(s_buf)
I("s_waitcnt vmcnt(0)")
proc1a(None)
I("s_nop 7")
proc_tail(False)
I(f"s_cmp_eq_u32 s{s_tail}, 1")
I("s_cbranch_scc1 K3_FIN")
I(f"v_add_u32 v{vREC}, s{s_lb}, v{vT2}")
I(f"ds_read_b32 v{vREC+1}, v{vREC} offset:64")
I(f"ds_read_b32 v{vREC+2}, v{vREC} offset:320")
I("s_waitcnt lgkmcnt(0)")
I(f"ds_write_b32 v{vREC}, v{vREC+1}")
I(f"ds_write_b32 v{vREC}, v{vREC+2} offset:256")
I(f"s_sub_u32 s{s_cnt}, s{s_cnt}, 16")
I("s_branch K3_SLOW_CHK")
L("K3_SLOW_NEXT")
I(f"s_add_u32 s{s_base}, s{s_base}, 256")
I(f"s_cmp_lt_u32 s{s_base}, {NE*4}")
I("s_cbranch_scc1 K3_SLOW_SCAN")
I(f"v_add_u32 v{vREC}, s{s_lb}, v{vT2}")
I(f"v_mov_b32 v{vREC+1}, s{s_inv}")
I(f"v_cmp_le_u32 vcc, s{s_cnt}, v{vLane}")
I("s_mov_b64 exec, vcc")
I(f"ds_write_b32 v{vREC}, v{vREC+1}")
I("s_mov_b64 exec, -1")
I(f"s_mov_b32 s{s_tail}, 1")
I("s_branch K3_SLOW_PROC")
L("K3_END")
I("s_endpgm")

E('.section .rodata,"a"')
E(".p2align 6")
E(".amdhsa_kernel gat_prep_kernel")
E("  .amdhsa_next_free_vgpr 48")
E("  .amdhsa_next_free_sgpr 48")
E("  .amdhsa_accum_offset 48")
E("  .amdhsa_group_segment_fixed_size 0")
E("  .amdhsa_kernarg_size 72")
E("  .amdhsa_user_sgpr_count 2")
E("  .amdhsa_user_sgpr_kernarg_segment_ptr 1")
E("  .amdhsa_system_sgpr_workgroup_id_x 1")
E(".end_amdhsa_kernel")
E(".p2align 6")
E(f".amdhsa_kernel {KN}")
E("  .amdhsa_next_free_vgpr 256")
E("  .amdhsa_next_free_sgpr 102")
E("  .amdhsa_accum_offset 256")
E("  .amdhsa_group_segment_fixed_size 0")
E("  .amdhsa_kernarg_size 72")
E("  .amdhsa_user_sgpr_count 2")
E("  .amdhsa_user_sgpr_kernarg_segment_ptr 1")
E("  .amdhsa_system_sgpr_workgroup_id_x 1")
E(".end_amdhsa_kernel")

path = sys.argv[1] if len(sys.argv) > 1 else 'standalone__graph_attention_gat__graph.s'
open(path, 'w').write("\n".join(OUT) + "\n")
print("vgprs used:", NV, "lines:", len(OUT))
```

```python
import sys

OUT = []
def E(s=""):
    OUT.append(s)
def I(s):
    OUT.append("    " + s)
def L(s):
    OUT.append(s + ":")

STAMPS = len(sys.argv) > 2 and sys.argv[2] == 'stamps'

N = 10000
NE = 160000
NCHUNK = 64
EPC = 2500
NT = 250
CELLS_BYTES = NCHUNK * NT * 128
WP_OFF = 0x200000
VT_OFF = 0x280000
WS_END = 0x281000
MARK = 0x7FFFFFF7
INV = 0x7FFFFFFF

L_CNT = 0
L_SD = 256
L_V = 2304
L_LIST = 6400
L_STG = L_LIST + 17 * 1024
BUFB = 8448
WSTR = 17056
L_TOTAL = L_STG + 8 * WSTR
L_AGG = L_STG
AGG_STRIDE = 2080
assert L_TOTAL <= 163840 and L_STG % 16 == 0

HEADER = open('standalone__graph_attention_gat__graph.s.ref').read().split('\n')
for ln in HEADER:
    if ln.startswith('; @launch') or ln.startswith('; Override') or ln.startswith('; grid=ceil'):
        continue
    if not ln.startswith(';'):
        break
    E(ln)
E("; @launch kernel=gat_prep_kernel grid=(288,1,1) block=(512,1,1) lds=34816")
E("; @launch kernel=standalone__graph_attention_gat__graph_kernel grid=(250,1,1) block=(512,1,1) lds=%d" % L_TOTAL)
E('.amdgcn_target "amdgcn-amd-amdhsa--gfx950"')
E(".text")

def srd(d, b, nbytes):
    I(f"s_mov_b32 s{d}, s{b}")
    I(f"s_and_b32 s{d+1}, s{b+1}, 0xffff")
    I(f"s_mov_b32 s{d+2}, {nbytes}")
    I(f"s_mov_b32 s{d+3}, 0x00020000")

E(".globl gat_prep_kernel")
E(".p2align 8")
E(".type gat_prep_kernel,@function")
L("gat_prep_kernel")
I("s_cmp_ge_u32 s2, 288")
I("s_cbranch_scc1 K1_END")
I("s_cmp_ge_u32 s2, 160")
I("s_cbranch_scc1 K1_PF")
I("s_load_dwordx4 s[4:7], s[0:1], 8")
I("s_load_dwordx4 s[8:11], s[0:1], 24")
I("s_load_dwordx2 s[12:13], s[0:1], 40")
I("s_load_dwordx2 s[14:15], s[0:1], 64")
I("s_cmp_ge_u32 s2, 128")
I("s_cbranch_scc1 K1_V")
I("s_cmp_ge_u32 s2, 64")
I("s_cbranch_scc1 K1_REPACK")
I("v_lshlrev_b32 v1, 4, v0")
for r in range(2, 6):
    I(f"v_mov_b32 v{r}, {INV}")
for k in range(4):
    I(f"ds_write_b128 v1, v[2:5] offset:{k*8192}")
I("v_lshlrev_b32 v6, 2, v0")
I("v_mov_b32 v7, 0")
I("ds_write_b32 v6, v7 offset:32768")
I(f"s_mul_i32 s28, s2, {EPC*4}")
for j in range(1, 5):
    I(f"s_add_u32 s{28+j}, s28, {j*2000}")
I("v_cmp_gt_u32 vcc, 500, v0")
I("s_waitcnt lgkmcnt(0)")
srd(20, 6, NE * 4)
srd(16, 4, NE * 4)
I("s_and_saveexec_b64 s[34:35], vcc")
for j in range(5):
    I(f"buffer_load_dword v{10+j}, v6, s[20:23], s{28+j} offen")
for j in range(5):
    I(f"buffer_load_dword v{15+j}, v6, s[16:19], s{28+j} offen")
srd(24, 14, CELLS_BYTES)
I("v_mov_b32 v8, 1")
I(f"v_mov_b32 v9, {32768+2044}")
I("s_barrier")
I("s_waitcnt vmcnt(5)")
for j in range(5):
    vD = 10 + j
    vq, vr, vt, vb = 20, 21, 30 + j, 23
    I(f"v_mul_u32_u24 v{vq}, 52429, v{vD}")
    I(f"v_lshrrev_b32 v{vq}, 18, v{vq}")
    I(f"v_mad_i32_i24 v{vr}, v{vq}, -5, v{vD}")
    I(f"v_lshrrev_b32 v{vt}, 3, v{vq}")
    I(f"v_lshlrev_b32 v24, 2, v{vt}")
    I(f"ds_add_rtn_u32 v{35+j}, v24, v8 offset:32768")
    I(f"v_and_b32 v{vb}, 7, v{vq}")
    I(f"v_cmp_lt_u32 vcc, 2, v{vr}")
    I(f"v_lshlrev_b32 v{vb}, 4, v{vb}")
    I(f"v_add_u32 v22, 5, v{vr}")
    I(f"v_cndmask_b32 v{vr}, v{vr}, v22, vcc")
    I(f"v_add_u32 v{vD}, v{vb}, v{vr}")
I("s_waitcnt vmcnt(0)")
for j in range(5):
    I(f"v_lshl_or_b32 v{15+j}, v{15+j}, 9, v{10+j}")
I("s_waitcnt lgkmcnt(0)")
for j in range(5):
    vt, vrank = 30 + j, 35 + j
    I(f"v_cmp_gt_u32 vcc, 32, v{vrank}")
    I(f"v_lshlrev_b32 v{vt}, 7, v{vt}")
    I(f"v_lshl_add_u32 v{vt}, v{vrank}, 2, v{vt}")
    I(f"v_cndmask_b32 v{vt}, v9, v{vt}, vcc")
    I(f"ds_write_b32 v{vt}, v{15+j}")
I("s_mov_b64 exec, s[34:35]")
I("v_lshrrev_b32 v2, 3, v0")
I("v_lshlrev_b32 v2, 2, v2")
I("v_and_b32 v3, 7, v0")
I("v_cmp_eq_u32 s[36:37], 7, v3")
I(f"v_mov_b32 v4, {MARK}")
I(f"s_mul_i32 s28, s2, {NT*128}")
for k in range(3):
    I(f"v_add_u32 v{5+k}, {k*8192}, v1")
I(f"v_add_u32 v8, {3*8192}, v1")
I("s_waitcnt lgkmcnt(0)")
I("s_barrier")
for k in range(4):
    I(f"ds_read_b128 v[{10+4*k}:{13+4*k}], v1 offset:{k*8192}")
    I(f"ds_read_b32 v{30+k}, v2 offset:{32768+k*256}")
I("s_waitcnt lgkmcnt(0)")
for k in range(4):
    I(f"v_cmp_lt_u32 vcc, 32, v{30+k}")
    I("s_and_b64 vcc, vcc, s[36:37]")
    I("s_nop 1")
    I(f"v_cndmask_b32 v{13+4*k}, v{13+4*k}, v4, vcc")
for k in range(3):
    I(f"buffer_store_dwordx4 v[{10+4*k}:{13+4*k}], v{5+k}, s[24:27], s28 offen")
I("v_cmp_gt_u32 vcc, 464, v0")
I("s_and_saveexec_b64 s[34:35], vcc")
I("s_cbranch_execz K1_END")
I("buffer_store_dwordx4 v[22:25], v8, s[24:27], s28 offen")
I("s_branch K1_END")
L("K1_REPACK")
I("v_lshrrev_b32 v1, 6, v0")
I("v_and_b32 v2, 63, v0")
I("v_readfirstlane_b32 s28, v1")
I("s_sub_u32 s29, s2, 64")
I("s_lshl_b32 s29, s29, 3")
I("s_add_u32 s29, s29, s28")
I("s_lshr_b32 s30, s29, 4")
I("s_lshr_b32 s31, s29, 2")
I("s_and_b32 s31, s31, 3")
I("s_and_b32 s32, s29, 3")
I("s_and_b32 s33, s31, 1")
I("s_lshl_b32 s33, s33, 9")
I("s_lshl_b32 s34, s30, 3")
I("s_add_u32 s33, s33, s34")
I("s_lshr_b32 s34, s31, 1")
I("s_lshl_b32 s34, s34, 2")
I("s_add_u32 s33, s33, s34")
I("s_lshl_b32 s33, s33, 9")
I("s_lshl_b32 s34, s32, 7")
I("s_add_u32 s33, s33, s34")
I("s_add_u32 s36, s33, 131072")
I("v_lshlrev_b32 v3, 1, v2")
I("s_waitcnt lgkmcnt(0)")
srd(16, 8, 4 * 256 * 256 * 2)
for i in range(8):
    so = "s33" if i < 4 else "s36"
    I(f"buffer_load_ushort v{10+i}, v3, s[16:19], {so} offen offset:{(i&3)*512}")
srd(24, 14, WS_END)
I("s_lshl_b32 s34, s32, 6")
I("s_add_u32 s34, s34, s30")
I("s_lshl_b32 s34, s34, 11")
I("s_lshl_b32 s35, s31, 8")
I("s_add_u32 s34, s34, s35")
I(f"s_add_u32 s34, s34, {WP_OFF}")
I("v_lshrrev_b32 v4, 5, v2")
I("v_lshlrev_b32 v4, 16, v4")
I("v_bfe_u32 v5, v2, 2, 1")
I("v_lshl_or_b32 v4, v5, 10, v4")
I("v_bfe_u32 v5, v2, 3, 2")
I("v_lshl_or_b32 v4, v5, 6, v4")
I("v_and_b32 v5, 3, v2")
I("v_lshl_or_b32 v4, v5, 4, v4")
I("s_waitcnt vmcnt(0)")
for i in range(4):
    I(f"v_lshl_or_b32 v{20+i}, v{11+2*i}, 16, v{10+2*i}")
I("buffer_store_dwordx4 v[20:23], v4, s[24:27], s34 offen")
I("s_branch K1_END")
L("K1_V")
I("v_lshrrev_b32 v1, 4, v0")
I("v_and_b32 v2, 15, v0")
I("s_sub_u32 s29, s2, 128")
I("s_lshl_b32 s29, s29, 5")
I("v_add_u32 v1, s29, v1")
I("v_lshlrev_b32 v3, 9, v1")
I("v_lshl_add_u32 v3, v2, 5, v3")
I("v_lshrrev_b32 v4, 8, v1")
I("v_lshlrev_b32 v4, 9, v4")
I("v_lshl_add_u32 v4, v2, 5, v4")
I("s_waitcnt lgkmcnt(0)")
srd(16, 8, 4 * 256 * 256 * 2)
srd(20, 10, 2048)
srd(28, 12, 2048)
srd(24, 14, WS_END)
I("buffer_load_dwordx4 v[8:11], v3, s[16:19], 0 offen")
I("buffer_load_dwordx4 v[12:15], v3, s[16:19], 0 offen offset:16")
I("buffer_load_dwordx4 v[16:19], v4, s[20:23], 0 offen")
I("buffer_load_dwordx4 v[20:23], v4, s[20:23], 0 offen offset:16")
I("buffer_load_dwordx4 v[24:27], v4, s[28:31], 0 offen")
I("buffer_load_dwordx4 v[28:31], v4, s[28:31], 0 offen offset:16")
I("v_mov_b32 v32, 0")
I("v_mov_b32 v33, 0")
I("s_waitcnt vmcnt(0)")
for i in range(8):
    I(f"v_lshlrev_b32 v34, 16, v{8+i}")
    I(f"v_and_b32 v35, 0xffff0000, v{8+i}")
    I(f"v_lshlrev_b32 v36, 16, v{16+i}")
    I(f"v_and_b32 v37, 0xffff0000, v{16+i}")
    I(f"v_lshlrev_b32 v38, 16, v{24+i}")
    I(f"v_and_b32 v39, 0xffff0000, v{24+i}")
    I("v_fmac_f32 v32, v34, v36")
    I("v_fmac_f32 v33, v34, v38")
    I("v_fmac_f32 v32, v35, v37")
    I("v_fmac_f32 v33, v35, v39")
for mod in ["quad_perm:[1,0,3,2]", "quad_perm:[2,3,0,1]", "row_half_mirror", "row_mirror"]:
    I("s_nop 1")
    I(f"v_add_f32_dpp v32, v32, v32 {mod} row_mask:0xf bank_mask:0xf")
    I(f"v_add_f32_dpp v33, v33, v33 {mod} row_mask:0xf bank_mask:0xf")
I("v_cmp_eq_u32 vcc, 0, v2")
I("s_nop 1")
I("v_cndmask_b32 v32, v33, v32, vcc")
I("v_mul_f32 v32, 0x3fb8aa3b, v32")
I("v_cvt_pk_bf16_f32 v32, v32, v32")
I("v_lshlrev_b32 v5, 1, v1")
I("v_lshl_add_u32 v5, v2, 11, v5")
I(f"v_add_u32 v5, {VT_OFF}, v5")
I("v_cmp_gt_u32 vcc, 2, v2")
I("s_and_saveexec_b64 s[34:35], vcc")
I("s_cbranch_execz K1_END")
I("buffer_store_short v32, v5, s[24:27], 0 offen")
I("s_branch K1_END")
L("K1_PF")
I("s_load_dwordx2 s[4:5], s[0:1], 0")
I("v_lshlrev_b32 v1, 4, v0")
I("s_sub_u32 s29, s2, 160")
I("s_mul_i32 s29, s29, 40960")
I("s_waitcnt lgkmcnt(0)")
srd(16, 4, N * 512)
for i in range(5):
    I(f"buffer_load_dwordx4 v[{4+4*(i%8)}:{7+4*(i%8)}], v1, s[16:19], s29 offen")
    I("s_add_u32 s29, s29, 8192")
I("s_waitcnt vmcnt(0)")
L("K1_END")
I("s_endpgm")

KN = "standalone__graph_attention_gat__graph_kernel"
E(f".globl {KN}")
E(".p2align 8")
E(f".type {KN},@function")

class Alloc:
    def __init__(self, start, limit):
        self.n = start
        self.limit = limit
    def __call__(self, cnt, align=1):
        self.n = (self.n + align - 1) // align * align
        r = self.n
        self.n += cnt
        assert self.n <= self.limit, ("reg overflow", self.n)
        return r

va = Alloc(1, 256)
vC16 = va(1); vG = va(1); vLane = va(1)
vAS0 = va(1); vAT0 = va(1); vAS = va(1); vAT = va(1); vAR0 = va(1); vAD0 = va(1); vLoff = va(1)
vKEY = va(1); vSD1 = va(1); vWoff = va(1)
vT2 = va(1); vT3 = va(1)
vT0 = va(2, 2); vT1 = vT0 + 1
vP = va(2, 2)
vONE = va(2, 2)
vSDq = va(4, 4)
vDEN = va(4, 4)
vACC = va(64, 4)
vH0 = va(32, 4)
vVS = va(32, 4)
vPOOL = va(64, 4)
vDA = va(8, 4)
vREC = va(4, 4)
vS = va(4, 4)
vU = va(4, 4)
vCN = va(1); vRA = va(1); vRB = va(1); vKR = va(1)
vBA = [va(1), va(1), va(1)]
NV = va.n

sX = 16; sWS = 20; sOUT = 24; sSRC = 28; sDST = 32
s_wv = 36; s_lb = 37; s_n0 = 38; s_n1 = 39
s_pl = 41; s_prem = 42; s_psub = 43; s_il = 44; s_irem = 45
s_buf = 47; s_bufx = 46; s_ahead = 48; s_mode = 49; s_mask = 50; s_tmp = 51; s_tmp2 = 52
s_node0 = 53; s_nn = 54; s_keyhi = 55; s_cnt = 56; s_base = 57; s_tail = 58
s_first = 60; s_inv = 62; s_tmp3 = 63; s_lbB = 40; s_nextn = 59; s_binB = 61
L_PT = L_CNT + 128
sM = 64
sMA = 80
sMB = 14
s_wo = 82
s_st = 83

def stamp(i):
    if STAMPS:
        I("s_memtime s[98:99]")
        I("s_waitcnt lgkmcnt(0)")
        I(f"s_mov_b32 s{s_st+i}, s98")
def v4(r): return f"v[{r}:{r+3}]"

L(KN)
I(f"s_cmp_ge_u32 s2, {NT}")
I("s_cbranch_scc1 K3_END")
stamp(0)
if STAMPS:
    I("s_memrealtime s[98:99]")
    I("s_waitcnt lgkmcnt(0)")
    I(f"s_mov_b32 s{s_st+14}, s98")
I("s_load_dwordx2 s[12:13], s[0:1], 64")
I("s_load_dwordx4 s[4:7], s[0:1], 0")
I("s_load_dwordx2 s[8:9], s[0:1], 16")
I("s_load_dwordx2 s[10:11], s[0:1], 48")
I(f"v_lshrrev_b32 v{vT0}, 6, v0")
I(f"v_and_b32 v{vLane}, 63, v0")
I(f"v_and_b32 v{vC16}, 15, v0")
I(f"v_readfirstlane_b32 s{s_wv}, v{vT0}")
I(f"v_bfe_u32 v{vG}, v0, 4, 2")
I(f"v_lshlrev_b32 v{vT1}, 4, v0")
I(f"s_mov_b32 s{s_inv}, {INV}")
for r in range(4):
    I(f"v_mov_b32 v{vSDq+r}, s{s_inv}")
for k in range(2):
    I(f"ds_write_b128 v{vT1}, {v4(vSDq)} offset:{L_LIST + k*8192}")
I(f"v_lshlrev_b32 v{vT2}, 2, v{vLane}")
I(f"v_mov_b32 v{vT0}, 0")
I(f"ds_write_b32 v{vT2}, v{vT0} offset:{L_CNT}")
vC = vDA
I(f"v_lshrrev_b32 v{vT0}, 3, v0")
I(f"v_mul_u32_u24 v{vT0}, {NT*128}, v{vT0}")
I(f"v_and_b32 v{vT2}, 7, v0")
I(f"v_lshl_add_u32 v{vT0}, v{vT2}, 4, v{vT0}")
I(f"s_lshl_b32 s{s_tmp}, s2, 7")
I(f"v_lshlrev_b32 v{vT2}, 3, v0")
I(f"s_mov_b32 s{s_cnt}, {VT_OFF}")
I("s_waitcnt lgkmcnt(0)")
srd(sWS, 12, WS_END)
I(f"buffer_load_dwordx4 {v4(vC)}, v{vT0}, s[{sWS}:{sWS+3}], s{s_tmp} offen")
I(f"buffer_load_dwordx2 v[{vS}:{vS+1}], v{vT2}, s[{sWS}:{sWS+3}], s{s_cnt} offen")
srd(sX, 4, N * 512)
def rows_load():
    I(f"s_mul_i32 s{s_node0}, s2, 40")
    I(f"s_mul_i32 s{s_tmp2}, s{s_wv}, 5")
    I(f"s_add_u32 s{s_node0}, s{s_node0}, s{s_tmp2}")
    I(f"s_lshl_b32 s{s_tmp2}, s{s_node0}, 9")
    I(f"v_min_u32 v{vT1}, 4, v{vC16}")
    I(f"v_lshlrev_b32 v{vT1}, 9, v{vT1}")
    I(f"v_lshl_add_u32 v{vT1}, v{vG}, 4, v{vT1}")
    for ks in range(8):
        I(f"buffer_load_dwordx4 {v4(vPOOL+4*ks)}, v{vT1}, s[{sX}:{sX+3}], s{s_tmp2} offen offset:{ks*64}")

I("s_barrier")
stamp(1)
rows_load()
I(f"s_mul_i32 s{s_buf}, s{s_wv}, {WSTR}")
I(f"s_add_u32 s{s_buf}, s{s_buf}, {L_STG}")
I(f"s_add_u32 s{s_tmp}, s{s_buf}, {BUFB}")
I(f"s_xor_b32 s{s_bufx}, s{s_buf}, s{s_tmp}")
I(f"v_and_b32 v{vT0}, 7, v{vC16}")
I(f"v_mul_u32_u24 v{vAS0}, 1056, v{vT0}")
I(f"v_lshrrev_b32 v{vT0}, 3, v{vC16}")
I(f"v_lshl_add_u32 v{vAS0}, v{vT0}, 9, v{vAS0}")
I(f"v_lshl_add_u32 v{vAS0}, v{vG}, 4, v{vAS0}")
I(f"v_bfe_u32 v{vT0}, v{vLane}, 2, 3")
I(f"v_mul_u32_u24 v{vAT0}, 1056, v{vT0}")
I(f"v_lshrrev_b32 v{vT0}, 5, v{vLane}")
I(f"v_lshl_add_u32 v{vAT0}, v{vT0}, 9, v{vAT0}")
I(f"v_lshlrev_b32 v{vAD0}, 5, v{vT0}")
I(f"v_and_b32 v{vT0}, 3, v{vLane}")
I(f"v_lshl_add_u32 v{vAT0}, v{vT0}, 3, v{vAT0}")
I(f"v_lshlrev_b32 v{vAR0}, 4, v{vG}")
I(f"v_and_b32 v{vT0}, 31, v{vLane}")
I(f"v_lshlrev_b32 v{vLoff}, 4, v{vT0}")
I(f"v_lshlrev_b32 v{vWoff}, 4, v{vLane}")
I(f"s_lshl_b32 s{s_tmp}, s{s_wv}, 16")
I(f"s_add_u32 s{s_wo}, s{s_tmp}, {WP_OFF}")
I(f"s_mov_b32 s{s_mask}, 0xfffffe00")
for r in range(2):
    I(f"v_mov_b32 v{vONE+r}, 0x3f803f80")
I(f"s_lshl_b32 s{s_lb}, s{s_wv}, 11")
I(f"s_add_u32 s{s_lb}, s{s_lb}, {L_LIST}")
I(f"s_mov_b32 s{s_psub}, 0")
I(f"s_mov_b32 s{s_mode}, 0")
I(f"s_mov_b32 s{s_first}, 1")
I(f"v_cmp_gt_u32 s[{sMA}:{sMA+1}], 12, v{vC16}")
I(f"v_cmp_gt_u32 s[{sMB}:{sMB+1}], 8, v{vC16}")
I(f"v_mov_b32 v{vT0}, 1")
I(f"s_waitcnt vmcnt(9)")
stamp(2)
vA8 = vH0
vP8 = vH0 + 4
for k in range(4):
    I(f"v_cmp_ne_u32 s[{sM+2*k}:{sM+2*k+1}], s{s_inv}, v{vC+k}")
    I(f"v_bfe_u32 v{vA8+k}, v{vC+k}, 3, 5")
    I(f"v_lshlrev_b32 v{vA8+k}, 2, v{vA8+k}")
for k in range(4):
    I(f"s_mov_b64 exec, s[{sM+2*k}:{sM+2*k+1}]")
    I(f"ds_add_rtn_u32 v{vP8+k}, v{vA8+k}, v{vT0} offset:{L_CNT}")
I("s_mov_b64 exec, -1")
for k in range(4):
    I(f"v_min_u32 v{vA8+k}, 64, v{vA8+k}")
I("s_waitcnt vmcnt(8)")
I(f"ds_write_b64 v{vT2}, v[{vS}:{vS+1}] offset:{L_V}")
I("s_waitcnt lgkmcnt(1)")
for k in range(4):
    I(f"v_min_u32 v{vP8+k}, 255, v{vP8+k}")
    I(f"v_lshlrev_b32 v{vP8+k}, 2, v{vP8+k}")
    I(f"v_lshl_add_u32 v{vP8+k}, v{vA8+k}, 8, v{vP8+k}")
for k in range(4):
    I(f"s_mov_b64 exec, s[{sM+2*k}:{sM+2*k+1}]")
    I(f"ds_write_b32 v{vP8+k}, v{vC+k} offset:{L_LIST}")
I("s_mov_b64 exec, -1")
I(f"v_and_b32 v{vT1}, 31, v{vLane}")
I(f"v_lshlrev_b32 v{vT3}, 2, v{vT1}")
I(f"v_mov_b32 v{vT2}, 256")
I(f"v_cmp_eq_u32 vcc, 30, v{vT1}")
I(f"v_cmp_gt_u32 s[{sM}:{sM+1}], 16, v{vT1}")
I(f"s_lshl_b32 s{s_tmp}, s{s_wv}, 1")
I(f"v_cndmask_b32 v{vT2}, v{vT2}, 0, vcc")
I(f"s_or_b64 s[{sM}:{sM+1}], s[{sM}:{sM+1}], vcc")
I(f"s_add_u32 s{s_tmp2}, s{s_tmp}, 1")
I(f"v_add_u32 v{vT1}, s{s_lb}, v{vAD0}")
I("s_waitcnt lgkmcnt(0)")
I("s_barrier")
stamp(3)
I(f"ds_read_b32 v{vT0}, v{vT3} offset:{L_CNT}")
for q in range(2):
    I(f"ds_read_b128 {v4(vDA+4*q)}, v{vT1} offset:{q*16}")
I("s_waitcnt lgkmcnt(2)")
I(f"v_cmp_gt_u32 vcc, v{vT0}, v{vT2}")
I(f"v_add_u32 v{vCN}, 15, v{vT0}")
I(f"v_lshrrev_b32 v{vCN}, 4, v{vCN}")
I(f"v_max_u32 v{vCN}, 1, v{vCN}")
I(f"s_and_b64 vcc, vcc, s[{sM}:{sM+1}]")
I(f"v_readlane_b32 s{s_n0}, v{vCN}, s{s_tmp}")
I("s_cbranch_vccnz K3_SLOW")
I(f"s_max_u32 s{s_n0}, s{s_n0}, 2")
I(f"s_mov_b32 s{s_pl}, s{s_lb}")
I(f"s_mov_b32 s{s_prem}, s{s_n0}")
I(f"s_mov_b32 s{s_il}, s{s_lb}")
I(f"s_mov_b32 s{s_irem}, s{s_n0}")
I(f"s_mov_b32 s{s_nextn}, 0")
I(f"s_mov_b32 s{s_lbB}, s{s_lb}")

_uid = [0]
def uid(p):
    _uid[0] += 1
    return f"{p}_{_uid[0]}"

def read_da(s_list):
    I(f"v_add_u32 v{vT1}, s{s_list}, v{vAD0}")
    for q in range(2):
        I(f"ds_read_b128 {v4(vDA+4*q)}, v{vT1} offset:{q*16}")

def issue(sb):
    I(f"s_mov_b32 m0, s{sb}")
    for i in range(8):
        I(f"v_and_or_b32 v{vDA+i}, v{vDA+i}, s{s_mask}, v{vLoff}")
        I(f"buffer_load_dwordx4 v{vDA+i}, s[{sX}:{sX+3}], 0 offen lds")
        if i < 7:
            I("s_add_u32 m0, m0, 1056")

def advance_issue():
    I(f"s_add_u32 s{s_il}, s{s_il}, 64")
    I(f"s_sub_u32 s{s_irem}, s{s_irem}, 1")
    I(f"s_cmp_eq_u32 s{s_irem}, 0")
    I(f"s_cselect_b32 s{s_il}, s{s_lbB}, s{s_il}")
    I(f"s_cselect_b32 s{s_irem}, s{s_nextn}, s{s_irem}")
    I(f"s_cselect_b32 s{s_nextn}, 0, s{s_nextn}")

vTR = vPOOL + 32
def proc1a(s_list_next):
    I(f"v_add_u32 v{vAS}, s{s_buf}, v{vAS0}")
    I(f"v_add_u32 v{vAT}, s{s_buf}, v{vAT0}")
    I(f"v_add_u32 v{vT0}, s{s_pl}, v{vAR0}")
    for ks in range(8):
        I(f"ds_read_b128 {v4(vPOOL+4*ks)}, v{vAS} offset:{ks*64}")
    I(f"ds_read_b128 {v4(vREC)}, v{vT0}")
    nlater = 1
    if s_list_next is not None:
        read_da(s_list_next)
        nlater += 2
    for j in range(16):
        I(f"ds_read_b64_tr_b16 v[{vTR+2*j}:{vTR+2*j+1}], v{vAT} offset:{j*32}")
    I("s_waitcnt lgkmcnt(15)")
    for ks in range(8):
        c = v4(vSDq) if ks == 0 else v4(vS)
        I(f"v_mfma_f32_16x16x32_bf16 {v4(vS)}, {v4(vPOOL+4*ks)}, {v4(vVS+4*ks)}, {c}")
    for k in range(4):
        I(f"v_cmp_eq_u32_sdwa s[{sM+2*k}:{sM+2*k+1}], v{vREC+k}, v{vKEY} src0_sel:BYTE_0 src1_sel:DWORD")
    I("s_waitcnt lgkmcnt(0)")

def v2(r): return f"v[{r}:{r+1}]"
def pbuild_list():
    l = []
    for k in range(4):
        l.append(f"v_mul_f32 v{vU+k}, 0x3e4ccccd, v{vS+k}")
    for k in range(4):
        l.append(f"v_max_f32 v{vU+k}, v{vS+k}, v{vU+k}")
    for k in range(4):
        l.append(f"v_exp_f32 v{vU+k}, v{vU+k}")
    for k in range(4):
        l.append(f"v_cndmask_b32 v{vU+k}, 0, v{vU+k}, s[{sM+2*k}:{sM+2*k+1}]")
    for k in range(2):
        l.append(f"v_cvt_pk_bf16_f32 v{vP+k}, v{vU+2*k}, v{vU+2*k+1}")
    l.append("s_nop 1")
    return l

def agg_list(first):
    l = []
    c = "0" if first else v4(vDEN)
    l.append(f"v_mfma_f32_16x16x16_bf16 {v4(vDEN)}, {v2(vONE)}, {v2(vP)}, {c}")
    for j in range(16):
        c = "0" if first else v4(vACC+4*j)
        l.append(f"v_mfma_f32_16x16x16_bf16 {v4(vACC+4*j)}, {v2(vTR+2*j)}, {v2(vP)}, {c}")
    return l

def dma_triplet(i, sb):
    t = []
    t.append(f"s_mov_b32 m0, s{sb}" if i == 0 else "s_add_u32 m0, m0, 1056")
    t.append(f"v_and_or_b32 v{vDA+i}, v{vDA+i}, s{s_mask}, v{vLoff}")
    t.append(f"buffer_load_dwordx4 v{vDA+i}, s[{sX}:{sX+3}], 0 offen lds")
    return t

def body(first, with_dma):
    l = pbuild_list() + agg_list(first)
    if with_dma:
        pos = [0, 6, 12, 19, 22, 25, 28, 31]
        out = []
        k = 0
        for idx, ins in enumerate(l):
            if k < 8 and idx == pos[k]:
                out += dma_triplet(k, s_buf)
                k += 1
            out.append(ins)
        assert k == 8
        l = out
    else:
        l = ["s_nop 3"] + l
    for ins in l:
        I(ins)

def proc_tail(allow_dma):
    u = uid("PT")
    if allow_dma:
        I(f"s_cmp_eq_u32 s{s_irem}, 0")
        I(f"s_cbranch_scc1 {u}_N")
        I(f"s_cmp_eq_u32 s{s_first}, 1")
        I(f"s_cbranch_scc1 {u}_DF")
        body(False, True)
        I(f"s_branch {u}_A")
        L(f"{u}_DF")
        body(True, True)
        L(f"{u}_A")
        advance_issue()
        I(f"s_add_u32 s{s_ahead}, s{s_ahead}, 1")
        I(f"s_branch {u}_E")
        L(f"{u}_N")
    I(f"s_cmp_eq_u32 s{s_first}, 1")
    I(f"s_cbranch_scc1 {u}_NF")
    body(False, False)
    I(f"s_branch {u}_E")
    L(f"{u}_NF")
    body(True, False)
    L(f"{u}_E")
    I(f"s_mov_b32 s{s_first}, 0")

def sdst(with_c1):
    l = []
    A = l.append
    A(f"v_and_b32 v{vT2}, 3, v{vC16}")
    A(f"v_lshlrev_b32 v{vT3}, 9, v{vT2}")
    A(f"v_lshl_add_u32 v{vT3}, v{vG}, 4, v{vT3}")
    for ks in range(8):
        A(f"ds_read_b128 {v4(vPOOL+32+4*ks)}, v{vT3} offset:{L_V+2048+ks*64}")
    for ks in range(8):
        A(f"ds_read_b128 {v4(vVS+4*ks)}, v{vT3} offset:{L_V+ks*64}")
    A("D")
    A(f"s_lshl_b32 s{s_tmp}, s{s_wv}, 5")
    A(f"v_lshlrev_b32 v{vT2}, 8, v{vT2}")
    A(f"v_lshl_add_u32 v{vT3}, v{vG}, 4, v{vT2}")
    A(f"v_add_u32 v{vT3}, s{s_tmp}, v{vT3}")
    A("D")
    A(f"v_cmp_gt_u32 s[{sM}:{sM+1}], 4, v{vC16}")
    A(f"v_cmp_gt_u32 s[{sM+2}:{sM+3}], 2, v{vG}")
    A(f"s_and_b64 s[{sM}:{sM+1}], s[{sM}:{sM+1}], s[{sM+2}:{sM+3}]")
    A("D")
    A("W")
    for ks in range(8):
        c = "0" if ks == 0 else v4(vS)
        A(f"v_mfma_f32_16x16x32_bf16 {v4(vS)}, {v4(vPOOL+4*ks)}, {v4(vPOOL+32+4*ks)}, {c}")
        if ks % 2 == 1:
            A("D")
    A("D")
    A("s_nop 7")
    A(f"s_mov_b64 exec, s[{sM}:{sM+1}]")
    A(f"ds_write_b128 v{vT3}, {v4(vS)} offset:{L_SD}")
    A("s_mov_b64 exec, -1")
    k = 0
    for ins in l:
        if ins == "D":
            if with_c1:
                for t in dma_triplet(k, s_tmp2):
                    I(t)
                k += 1
        elif ins == "W":
            if with_c1:
                I(f"s_waitcnt vmcnt({8 + k}) lgkmcnt(8)")
            else:
                I("s_waitcnt lgkmcnt(8)")
        else:
            I(ins)
    assert (not with_c1) or k == 8

def sd_read():
    I(f"v_and_b32 v{vT2}, 3, v{vC16}")
    I(f"v_lshlrev_b32 v{vT2}, 8, v{vT2}")
    I(f"v_lshrrev_b32 v{vKEY}, 2, v{vC16}")
    I(f"v_lshl_add_u32 v{vT2}, v{vKEY}, 2, v{vT2}")
    I(f"s_lshl_b32 s{s_tmp}, s{s_wv}, 5")
    I(f"v_add_u32 v{vT3}, s{s_tmp}, v{vT2}")
    I(f"s_lshr_b32 s{s_tmp}, s{s_binB}, 1")
    I(f"s_lshl_b32 s{s_tmp}, s{s_tmp}, 5")
    I(f"v_add_u32 v{vT2}, s{s_tmp}, v{vT2}")
    I(f"ds_read_b32 v{vSDq}, v{vT3} offset:{L_SD}")
    I(f"ds_read_b32 v{vSD1}, v{vT2} offset:{L_SD+12}")
    I(f"s_lshl_b32 s{s_tmp}, s{s_wv}, 4")
    I(f"v_add_u32 v{vKEY}, s{s_tmp}, v{vKEY}")

def bfrag_addrs(use_pt):
    for G in range(3):
        I(f"v_add_u32 v{vRA}, {16*G}, v{vC16}")
        if G == 2:
            I(f"v_min_u32 v{vRA}, 39, v{vRA}")
        I(f"v_mul_u32_u24 v{vRB}, 13, v{vRA}")
        I(f"v_lshrrev_b32 v{vRB}, 6, v{vRB}")
        I(f"v_mad_i32_i24 v{vRA}, v{vRB}, -5, v{vRA}")
        if use_pt:
            I(f"v_lshlrev_b32 v{vKR}, 2, v{vRB}")
            I(f"ds_read_b32 v{vKR}, v{vKR} offset:{L_PT}")
            I(f"v_cmp_lt_u32 vcc, 2, v{vRA}")
            I("s_waitcnt lgkmcnt(0)")
            I(f"v_cndmask_b32 v{vRB}, v{vRB}, v{vKR}, vcc")
        I(f"v_mul_u32_u24 v{vRB}, {WSTR}, v{vRB}")
        I(f"v_mul_u32_u24 v{vRA}, {AGG_STRIDE}, v{vRA}")
        I(f"v_add3_u32 v{vBA[G]}, v{vRA}, v{vRB}, v{vAR0}")
        I(f"v_add_u32 v{vBA[G]}, {L_STG}, v{vBA[G]}")

I("s_waitcnt lgkmcnt(0)")
issue(s_buf)
advance_issue()
read_da(s_il)
I(f"s_xor_b32 s{s_tmp2}, s{s_buf}, s{s_bufx}")
I("s_waitcnt lgkmcnt(0)")
sdst(True)
advance_issue()
I(f"s_mov_b32 s{s_ahead}, 2")
I(f"v_lshl_or_b32 v{vKR}, v{vCN}, 4, v{vC16}")
I(f"v_mov_b32 v{vRA}, 0")
I(f"v_mov_b32 v{vRB}, 0")
for j in range(8):
    I(f"v_readlane_b32 s{s_tmp}, v{vKR}, {2*j}")
    I(f"v_readlane_b32 s{s_tmp2}, v{vKR}, {2*j+1}")
    I("s_nop 0")
    I(f"v_cmp_gt_u32 vcc, s{s_tmp}, v{vKR}")
    I(f"v_cmp_lt_u32 s[{sM}:{sM+1}], s{s_tmp2}, v{vKR}")
    I("s_nop 1")
    I(f"v_addc_co_u32 v{vRA}, vcc, 0, v{vRA}, vcc")
    I(f"v_addc_co_u32 v{vRB}, vcc, 0, v{vRB}, s[{sM}:{sM+1}]")
I(f"s_lshl_b32 s{s_tmp}, s{s_wv}, 1")
I("s_nop 0")
I(f"v_readlane_b32 s{s_tmp2}, v{vRA}, s{s_tmp}")
I("s_nop 1")
I(f"v_cmp_eq_u32 vcc, s{s_tmp2}, v{vRB}")
I("s_and_b64 vcc, vcc, 0xaaaa")
I(f"s_ff1_i32_b64 s{s_binB}, vcc")
I(f"v_mov_b32 v{vRA}, s{s_wv}")
I(f"s_lshr_b32 s{s_tmp}, s{s_binB}, 1")
I(f"s_lshl_b32 s{s_tmp}, s{s_tmp}, 2")
I(f"v_mov_b32 v{vRB}, s{s_tmp}")
I(f"v_readlane_b32 s{s_n1}, v{vCN}, s{s_binB}")
I("s_mov_b64 exec, 1")
I(f"ds_write_b32 v{vRB}, v{vRA} offset:{L_PT}")
I("s_mov_b64 exec, -1")
I(f"s_lshl_b32 s{s_lbB}, s{s_binB}, 10")
I(f"s_add_u32 s{s_lbB}, s{s_lbB}, {L_LIST}")
I(f"s_cmp_eq_u32 s{s_irem}, 0")
I(f"s_cselect_b32 s{s_il}, s{s_lbB}, s{s_il}")
I(f"s_cselect_b32 s{s_irem}, s{s_n1}, s{s_irem}")
I(f"s_cselect_b32 s{s_nextn}, 0, s{s_n1}")
I("s_waitcnt lgkmcnt(0)")
I("s_barrier")
sd_read()
bfrag_addrs(True)
for r in range(1, 4):
    I(f"v_mov_b32 v{vSDq+r}, v{vSDq}")
stamp(4)
stamp(5)

L("K3_LOOP")
I(f"s_cmp_ge_u32 s{s_ahead}, 2")
I("s_cbranch_scc1 K3_W8")
I("s_waitcnt vmcnt(0)")
L("K3_W8")
I("s_waitcnt vmcnt(8)")
proc1a(s_il)
proc_tail(True)
I(f"s_sub_u32 s{s_ahead}, s{s_ahead}, 1")
I(f"s_xor_b32 s{s_buf}, s{s_buf}, s{s_bufx}")
I(f"s_add_u32 s{s_pl}, s{s_pl}, 64")
I(f"s_sub_u32 s{s_prem}, s{s_prem}, 1")
I(f"s_cmp_lg_u32 s{s_prem}, 0")
I("s_cbranch_scc1 K3_LOOP")
L("K3_FIN")
I(f"s_cmp_eq_u32 s{s_psub}, 1")
I("s_cbranch_scc1 K3_F1")

NRING = 15
def wslot(slot):
    if slot < 8:
        return vPOOL + 8*slot
    if slot < 12:
        return vVS + 8*(slot - 8)
    return vACC + 36 + 8*(slot - 12)
def wload(ks, slot):
    if ks % 2 == 0:
        I(f"s_add_u32 s{s_tmp3}, s{s_wo}, {ks*2048}")
    for j in range(2):
        I(f"buffer_load_dwordx4 {v4(wslot(slot) + 4*j)}, v{vWoff}, s[{sWS}:{sWS+3}], s{s_tmp3} offen offset:{(ks%2)*2048 + j*1024}")

def finalize(sub):
    I(f"v_add_f32 v{vT0}, 0x3089705f, v{vDEN}")
    I(f"v_rcp_f32 v{vT0}, v{vT0}")
    I("s_nop 0")
    I(f"v_mul_f32 v{vT0}, 0.25, v{vT0}")
    if sub == 0:
        for r in range(4):
            I(f"v_mov_b32 v{vSDq+r}, v{vSD1}")
        I(f"v_lshrrev_b32 v{vKEY}, 2, v{vC16}")
        I(f"s_lshl_b32 s{s_tmp}, s{s_binB}, 3")
        I(f"v_add_u32 v{vKEY}, s{s_tmp}, v{vKEY}")
        I(f"s_mov_b32 s{s_psub}, 1")
        I(f"s_mov_b32 s{s_pl}, s{s_lbB}")
        I(f"s_mov_b32 s{s_prem}, s{s_n1}")
        I(f"s_mov_b32 s{s_first}, 1")
    else:
        I("s_nop 7")
    for j in range(16):
        d = vH0 + 2*j if sub == 0 else vACC + 4*j
        a = vACC + 4*j
        I(f"v_pk_mul_f32 v[{a}:{a+1}], v[{a}:{a+1}], v[{vT0}:{vT0+1}] op_sel_hi:[1,0]")
        I(f"v_pk_mul_f32 v[{a+2}:{a+3}], v[{a+2}:{a+3}], v[{vT0}:{vT0+1}] op_sel_hi:[1,0]")
        I(f"v_cvt_pk_bf16_f32 v{d}, v{a}, v{a+1}")
        I(f"v_cvt_pk_bf16_f32 v{d+1}, v{a+2}, v{a+3}")
    if sub == 0:
        I(f"s_cmp_eq_u32 s{s_mode}, 0")
        I("s_cbranch_scc1 K3_LOOP")
        I("s_branch K3_SLOW_SUB")

L("K3_F0")
stamp(6)
finalize(0)
L("K3_F1")
stamp(8)
for ks in range(12):
    wload(ks, ks)
finalize(1)
I(f"v_lshrrev_b32 v{vT0}, 2, v{vC16}")
I(f"v_mul_u32_u24 v{vT1}, {AGG_STRIDE}, v{vT0}")
I(f"s_mul_i32 s{s_tmp}, s{s_wv}, {WSTR}")
I(f"s_add_u32 s{s_tmp}, s{s_tmp}, {L_STG}")
I(f"v_and_b32 v{vT2}, 3, v{vC16}")
I(f"v_lshl_add_u32 v{vT1}, v{vT2}, 3, v{vT1}")
I(f"v_lshl_add_u32 v{vT1}, v{vG}, 5, v{vT1}")
I(f"v_add_u32 v{vT1}, s{s_tmp}, v{vT1}")
stamp(9)
I(f"s_mov_b64 exec, s[{sMA}:{sMA+1}]")
for j in range(16):
    I(f"ds_write_b64 v{vT1}, v[{vH0+2*j}:{vH0+2*j+1}] offset:{j*128}")
I(f"s_mov_b64 exec, s[{sMB}:{sMB+1}]")
for j in range(16):
    I(f"ds_write_b64 v{vT1}, v[{vACC+4*j}:{vACC+4*j+1}] offset:{3*AGG_STRIDE+j*128}")
I("s_mov_b64 exec, -1")
srd(sOUT, 10, N * 512)
I("s_waitcnt lgkmcnt(0)")
for ks in range(12, NRING):
    wload(ks, ks)
I("s_barrier")
stamp(10)
vO = vH0
vB = vACC
def bread(ks, slot):
    base = vB + 12*slot
    for G in range(3):
        I(f"ds_read_b128 {v4(base+4*G)}, v{vBA[G]} offset:{ks*64}")
NBS = 3
bread(0, 0)
bread(1, 1)
for ks in range(32):
    if ks + 2 < 32:
        bread(ks + 2, (ks + 2) % NBS)
    n_v = 2 * (min(32, ks + NRING) - ks - 1)
    n_l = 3 * (min(32, ks + 3) - ks - 1)
    I(f"s_waitcnt vmcnt({n_v}) lgkmcnt({n_l})")
    for j in range(2):
        w = v4(wslot(ks % NRING) + 4*j)
        for G in range(3):
            o = vO + 8*G + 4*j
            c = "0" if ks == 0 else v4(o)
            I(f"v_mfma_f32_16x16x32_bf16 {v4(o)}, {w}, {v4(vB + 12*(ks % NBS) + 4*G)}, {c}")
    if ks + NRING < 32:
        wload(ks + NRING, ks % NRING)
stamp(11)
I(f"s_mul_i32 s{s_tmp}, s2, {40*512}")
I(f"s_lshl_b32 s{s_tmp2}, s{s_wv}, 6")
I(f"s_add_u32 s{s_tmp}, s{s_tmp}, s{s_tmp2}")
I(f"v_lshlrev_b32 v{vT0}, 9, v{vC16}")
I(f"v_lshl_add_u32 v{vT0}, v{vG}, 4, v{vT0}")
I(f"v_add_u32 v{vT1}, {16*512}, v{vT0}")
I(f"v_add_u32 v{vT2}, {32*512}, v{vT0}")
I("s_nop 4")
for G in range(3):
    pk = vPOOL + 4*G
    for j in range(2):
        o = vO + 8*G + 4*j
        I(f"v_cvt_pk_bf16_f32 v{pk+2*j}, v{o}, v{o+1}")
        I(f"v_cvt_pk_bf16_f32 v{pk+2*j+1}, v{o+2}, v{o+3}")
    va_ = (vT0, vT1, vT2)[G]
    if G == 2:
        I(f"s_mov_b64 exec, s[{sMB}:{sMB+1}]")
    I(f"buffer_store_dwordx4 {v4(pk)}, v{va_}, s[{sOUT}:{sOUT+3}], s{s_tmp} offen")
if STAMPS:
    I("s_mov_b64 exec, -1")
    I("s_waitcnt vmcnt(0)")
    stamp(12)
    I("s_memrealtime s[98:99]")
    I("s_waitcnt lgkmcnt(0)")
    I(f"s_mov_b32 s{s_st+13}, s98")
    I(f"s_mov_b32 s{s_st+7}, s{s_st+6}")
    I(f"s_mov_b32 s{sWS+2}, 0x400000")
    I(f"s_lshl_b32 s{s_tmp}, s2, 3")
    I(f"s_add_u32 s{s_tmp}, s{s_tmp}, s{s_wv}")
    I(f"s_lshl_b32 s{s_tmp}, s{s_tmp}, 7")
    I(f"s_add_u32 s{s_tmp}, s{s_tmp}, 0x300000")
    I(f"v_mov_b32 v{vT0}, 0")
    for i in range(15):
        I(f"v_mov_b32 v{vT1}, s{s_st+i}")
        I(f"buffer_store_dword v{vT1}, v{vT0}, s[{sWS}:{sWS+3}], s{s_tmp} offen offset:{4*i}")
        I("s_nop 1")
I("s_branch K3_END")

L("K3_SLOW")
I(f"s_mov_b32 s{s_mode}, 1")
srd(sSRC, 6, NE * 4)
srd(sDST, 8, NE * 4)
I("s_waitcnt vmcnt(0) lgkmcnt(0)")
sdst(False)
I(f"s_lshl_b32 s{s_binB}, s{s_wv}, 1")
I(f"s_add_u32 s{s_binB}, s{s_binB}, 1")
I(f"s_add_u32 s{s_lbB}, s{s_lb}, 1024")
sd_read()
bfrag_addrs(False)
I("s_waitcnt lgkmcnt(0)")
for r in range(1, 4):
    I(f"v_mov_b32 v{vSDq+r}, v{vSDq}")
L("K3_SLOW_SUB")
I(f"s_mul_i32 s{s_node0}, s2, 40")
I(f"s_mul_i32 s{s_tmp}, s{s_wv}, 5")
I(f"s_add_u32 s{s_node0}, s{s_node0}, s{s_tmp}")
I(f"s_mul_i32 s{s_tmp}, s{s_psub}, 3")
I(f"s_add_u32 s{s_node0}, s{s_node0}, s{s_tmp}")
I(f"s_sub_u32 s{s_nn}, 3, s{s_psub}")
I(f"s_lshl_b32 s{s_keyhi}, s{s_wv}, 1")
I(f"s_add_u32 s{s_keyhi}, s{s_keyhi}, s{s_psub}")
I(f"s_lshl_b32 s{s_keyhi}, s{s_keyhi}, 3")
I(f"s_mov_b32 s{s_cnt}, 0")
I(f"s_mov_b32 s{s_base}, 0")
I(f"s_mov_b32 s{s_tail}, 0")
I(f"s_mov_b32 s{s_pl}, s{s_lb}")
I(f"v_lshlrev_b32 v{vT2}, 2, v{vLane}")
L("K3_SLOW_SCAN")
I(f"buffer_load_dword v{vREC}, v{vT2}, s[{sDST}:{sDST+3}], s{s_base} offen")
I(f"buffer_load_dword v{vREC+1}, v{vT2}, s[{sSRC}:{sSRC+3}], s{s_base} offen")
I("s_waitcnt vmcnt(0)")
I(f"v_subrev_u32 v{vREC}, s{s_node0}, v{vREC}")
I(f"v_cmp_gt_u32 vcc, s{s_nn}, v{vREC}")
I("s_nop 1")
I("s_cbranch_vccz K3_SLOW_NEXT")
I(f"v_mbcnt_lo_u32_b32 v{vREC+2}, vcc_lo, 0")
I(f"v_mbcnt_hi_u32_b32 v{vREC+2}, vcc_hi, v{vREC+2}")
I(f"v_add_u32 v{vREC+2}, s{s_cnt}, v{vREC+2}")
I(f"v_lshlrev_b32 v{vREC+2}, 2, v{vREC+2}")
I(f"v_add_u32 v{vREC+2}, s{s_lb}, v{vREC+2}")
I(f"v_or_b32 v{vREC}, s{s_keyhi}, v{vREC}")
I(f"v_lshl_or_b32 v{vREC}, v{vREC+1}, 9, v{vREC}")
I(f"s_bcnt1_i32_b64 s{s_tmp}, vcc")
I("s_mov_b64 exec, vcc")
I(f"ds_write_b32 v{vREC+2}, v{vREC}")
I("s_mov_b64 exec, -1")
I(f"s_add_u32 s{s_cnt}, s{s_cnt}, s{s_tmp}")
L("K3_SLOW_CHK")
I(f"s_cmp_lt_u32 s{s_cnt}, 16")
I("s_cbranch_scc1 K3_SLOW_NEXT")
L("K3_SLOW_PROC")
read_da(s_lb)
I("s_waitcnt lgkmcnt(0)")
issue(s_buf)
I("s_waitcnt vmcnt(0)")
proc1a(None)
I("s_nop 7")
proc_tail(False)
I(f"s_cmp_eq_u32 s{s_tail}, 1")
I("s_cbranch_scc1 K3_FIN")
I(f"v_add_u32 v{vREC}, s{s_lb}, v{vT2}")
I(f"ds_read_b32 v{vREC+1}, v{vREC} offset:64")
I(f"ds_read_b32 v{vREC+2}, v{vREC} offset:320")
I("s_waitcnt lgkmcnt(0)")
I(f"ds_write_b32 v{vREC}, v{vREC+1}")
I(f"ds_write_b32 v{vREC}, v{vREC+2} offset:256")
I(f"s_sub_u32 s{s_cnt}, s{s_cnt}, 16")
I("s_branch K3_SLOW_CHK")
L("K3_SLOW_NEXT")
I(f"s_add_u32 s{s_base}, s{s_base}, 256")
I(f"s_cmp_lt_u32 s{s_base}, {NE*4}")
I("s_cbranch_scc1 K3_SLOW_SCAN")
I(f"v_add_u32 v{vREC}, s{s_lb}, v{vT2}")
I(f"v_mov_b32 v{vREC+1}, s{s_inv}")
I(f"v_cmp_le_u32 vcc, s{s_cnt}, v{vLane}")
I("s_mov_b64 exec, vcc")
I(f"ds_write_b32 v{vREC}, v{vREC+1}")
I("s_mov_b64 exec, -1")
I(f"s_mov_b32 s{s_tail}, 1")
I("s_branch K3_SLOW_PROC")
L("K3_END")
I("s_endpgm")

E('.section .rodata,"a"')
E(".p2align 6")
E(".amdhsa_kernel gat_prep_kernel")
E("  .amdhsa_next_free_vgpr 48")
E("  .amdhsa_next_free_sgpr 48")
E("  .amdhsa_accum_offset 48")
E("  .amdhsa_group_segment_fixed_size 0")
E("  .amdhsa_kernarg_size 72")
E("  .amdhsa_user_sgpr_count 2")
E("  .amdhsa_user_sgpr_kernarg_segment_ptr 1")
E("  .amdhsa_system_sgpr_workgroup_id_x 1")
E(".end_amdhsa_kernel")
E(".p2align 6")
E(f".amdhsa_kernel {KN}")
E("  .amdhsa_next_free_vgpr 256")
E("  .amdhsa_next_free_sgpr 102")
E("  .amdhsa_accum_offset 256")
E("  .amdhsa_group_segment_fixed_size 0")
E("  .amdhsa_kernarg_size 72")
E("  .amdhsa_user_sgpr_count 2")
E("  .amdhsa_user_sgpr_kernarg_segment_ptr 1")
E("  .amdhsa_system_sgpr_workgroup_id_x 1")
E(".end_amdhsa_kernel")

path = sys.argv[1] if len(sys.argv) > 1 else 'standalone__graph_attention_gat__graph.s'
open(path, 'w').write("\n".join(OUT) + "\n")
print("vgprs used:", NV, "lines:", len(OUT))
```

```python
import sys

OUT = []
def E(s=""):
    OUT.append(s)
def I(s):
    OUT.append("    " + s)
def L(s):
    OUT.append(s + ":")

STAMPS = len(sys.argv) > 2 and sys.argv[2] == 'stamps'

N = 10000
NE = 160000
NCHUNK = 64
EPC = 2500
NT = 250
CELLS_BYTES = NCHUNK * NT * 128
WP_OFF = 0x200000
VT_OFF = 0x280000
WS_END = 0x281000
MARK = 0x7FFFFFF7
INV = 0x7FFFFFFF

L_CNT = 0
L_SD = 256
L_V = 2304
L_LIST = 6400
L_STG = L_LIST + 17 * 1024
BUFB = 8448
WSTR = 17056
L_TOTAL = L_STG + 8 * WSTR
L_AGG = L_STG
AGG_STRIDE = 2080
assert L_TOTAL <= 163840 and L_STG % 16 == 0

HEADER = open('standalone__graph_attention_gat__graph.s.ref').read().split('\n')
for ln in HEADER:
    if ln.startswith('; @launch') or ln.startswith('; Override') or ln.startswith('; grid=ceil'):
        continue
    if not ln.startswith(';'):
        break
    E(ln)
E("; @launch kernel=gat_prep_kernel grid=(288,1,1) block=(512,1,1) lds=34816")
E("; @launch kernel=standalone__graph_attention_gat__graph_kernel grid=(250,1,1) block=(512,1,1) lds=%d" % L_TOTAL)
E('.amdgcn_target "amdgcn-amd-amdhsa--gfx950"')
E(".text")

def srd(d, b, nbytes):
    I(f"s_mov_b32 s{d}, s{b}")
    I(f"s_and_b32 s{d+1}, s{b+1}, 0xffff")
    I(f"s_mov_b32 s{d+2}, {nbytes}")
    I(f"s_mov_b32 s{d+3}, 0x00020000")

E(".globl gat_prep_kernel")
E(".p2align 8")
E(".type gat_prep_kernel,@function")
L("gat_prep_kernel")
I("s_cmp_ge_u32 s2, 288")
I("s_cbranch_scc1 K1_END")
I("s_cmp_ge_u32 s2, 160")
I("s_cbranch_scc1 K1_PF")
I("s_load_dwordx4 s[4:7], s[0:1], 8")
I("s_load_dwordx4 s[8:11], s[0:1], 24")
I("s_load_dwordx2 s[12:13], s[0:1], 40")
I("s_load_dwordx2 s[14:15], s[0:1], 64")
I("s_cmp_ge_u32 s2, 128")
I("s_cbranch_scc1 K1_V")
I("s_cmp_ge_u32 s2, 64")
I("s_cbranch_scc1 K1_REPACK")
I("v_lshlrev_b32 v1, 4, v0")
for r in range(2, 6):
    I(f"v_mov_b32 v{r}, {INV}")
for k in range(4):
    I(f"ds_write_b128 v1, v[2:5] offset:{k*8192}")
I("v_lshlrev_b32 v6, 2, v0")
I("v_mov_b32 v7, 0")
I("ds_write_b32 v6, v7 offset:32768")
I(f"s_mul_i32 s28, s2, {EPC*4}")
for j in range(1, 5):
    I(f"s_add_u32 s{28+j}, s28, {j*2000}")
I("v_cmp_gt_u32 vcc, 500, v0")
I("s_waitcnt lgkmcnt(0)")
srd(20, 6, NE * 4)
srd(16, 4, NE * 4)
I("s_and_saveexec_b64 s[34:35], vcc")
for j in range(5):
    I(f"buffer_load_dword v{10+j}, v6, s[20:23], s{28+j} offen")
for j in range(5):
    I(f"buffer_load_dword v{15+j}, v6, s[16:19], s{28+j} offen")
srd(24, 14, CELLS_BYTES)
I("v_mov_b32 v8, 1")
I(f"v_mov_b32 v9, {32768+2044}")
I("s_barrier")
I("s_waitcnt vmcnt(5)")
for j in range(5):
    vD = 10 + j
    vq, vr, vt, vb = 20, 21, 30 + j, 23
    I(f"v_mul_u32_u24 v{vq}, 52429, v{vD}")
    I(f"v_lshrrev_b32 v{vq}, 18, v{vq}")
    I(f"v_mad_i32_i24 v{vr}, v{vq}, -5, v{vD}")
    I(f"v_lshrrev_b32 v{vt}, 3, v{vq}")
    I(f"v_lshlrev_b32 v24, 2, v{vt}")
    I(f"ds_add_rtn_u32 v{35+j}, v24, v8 offset:32768")
    I(f"v_and_b32 v{vb}, 7, v{vq}")
    I(f"v_cmp_lt_u32 vcc, 2, v{vr}")
    I(f"v_lshlrev_b32 v{vb}, 4, v{vb}")
    I(f"v_add_u32 v22, 5, v{vr}")
    I(f"v_cndmask_b32 v{vr}, v{vr}, v22, vcc")
    I(f"v_add_u32 v{vD}, v{vb}, v{vr}")
I("s_waitcnt vmcnt(0)")
for j in range(5):
    I(f"v_lshl_or_b32 v{15+j}, v{15+j}, 9, v{10+j}")
I("s_waitcnt lgkmcnt(0)")
for j in range(5):
    vt, vrank = 30 + j, 35 + j
    I(f"v_cmp_gt_u32 vcc, 32, v{vrank}")
    I(f"v_lshlrev_b32 v{vt}, 7, v{vt}")
    I(f"v_lshl_add_u32 v{vt}, v{vrank}, 2, v{vt}")
    I(f"v_cndmask_b32 v{vt}, v9, v{vt}, vcc")
    I(f"ds_write_b32 v{vt}, v{15+j}")
I("s_mov_b64 exec, s[34:35]")
I("v_lshrrev_b32 v2, 3, v0")
I("v_lshlrev_b32 v2, 2, v2")
I("v_and_b32 v3, 7, v0")
I("v_cmp_eq_u32 s[36:37], 7, v3")
I(f"v_mov_b32 v4, {MARK}")
I(f"s_mul_i32 s28, s2, {NT*128}")
for k in range(3):
    I(f"v_add_u32 v{5+k}, {k*8192}, v1")
I(f"v_add_u32 v8, {3*8192}, v1")
I("s_waitcnt lgkmcnt(0)")
I("s_barrier")
for k in range(4):
    I(f"ds_read_b128 v[{10+4*k}:{13+4*k}], v1 offset:{k*8192}")
    I(f"ds_read_b32 v{30+k}, v2 offset:{32768+k*256}")
I("s_waitcnt lgkmcnt(0)")
for k in range(4):
    I(f"v_cmp_lt_u32 vcc, 32, v{30+k}")
    I("s_and_b64 vcc, vcc, s[36:37]")
    I("s_nop 1")
    I(f"v_cndmask_b32 v{13+4*k}, v{13+4*k}, v4, vcc")
for k in range(3):
    I(f"buffer_store_dwordx4 v[{10+4*k}:{13+4*k}], v{5+k}, s[24:27], s28 offen")
I("v_cmp_gt_u32 vcc, 464, v0")
I("s_and_saveexec_b64 s[34:35], vcc")
I("s_cbranch_execz K1_END")
I("buffer_store_dwordx4 v[22:25], v8, s[24:27], s28 offen")
I("s_branch K1_END")
L("K1_REPACK")
I("v_lshrrev_b32 v1, 6, v0")
I("v_and_b32 v2, 63, v0")
I("v_readfirstlane_b32 s28, v1")
I("s_sub_u32 s29, s2, 64")
I("s_lshl_b32 s29, s29, 3")
I("s_add_u32 s29, s29, s28")
I("s_lshr_b32 s30, s29, 4")
I("s_lshr_b32 s31, s29, 2")
I("s_and_b32 s31, s31, 3")
I("s_and_b32 s32, s29, 3")
I("s_and_b32 s33, s31, 1")
I("s_lshl_b32 s33, s33, 9")
I("s_lshl_b32 s34, s30, 3")
I("s_add_u32 s33, s33, s34")
I("s_lshr_b32 s34, s31, 1")
I("s_lshl_b32 s34, s34, 2")
I("s_add_u32 s33, s33, s34")
I("s_lshl_b32 s33, s33, 9")
I("s_lshl_b32 s34, s32, 7")
I("s_add_u32 s33, s33, s34")
I("s_add_u32 s36, s33, 131072")
I("v_lshlrev_b32 v3, 1, v2")
I("s_waitcnt lgkmcnt(0)")
srd(16, 8, 4 * 256 * 256 * 2)
for i in range(8):
    so = "s33" if i < 4 else "s36"
    I(f"buffer_load_ushort v{10+i}, v3, s[16:19], {so} offen offset:{(i&3)*512}")
srd(24, 14, WS_END)
I("s_lshl_b32 s34, s32, 6")
I("s_add_u32 s34, s34, s30")
I("s_lshl_b32 s34, s34, 11")
I("s_lshl_b32 s35, s31, 8")
I("s_add_u32 s34, s34, s35")
I(f"s_add_u32 s34, s34, {WP_OFF}")
I("v_lshrrev_b32 v4, 5, v2")
I("v_lshlrev_b32 v4, 16, v4")
I("v_bfe_u32 v5, v2, 2, 1")
I("v_lshl_or_b32 v4, v5, 10, v4")
I("v_bfe_u32 v5, v2, 3, 2")
I("v_lshl_or_b32 v4, v5, 6, v4")
I("v_and_b32 v5, 3, v2")
I("v_lshl_or_b32 v4, v5, 4, v4")
I("s_waitcnt vmcnt(0)")
for i in range(4):
    I(f"v_lshl_or_b32 v{20+i}, v{11+2*i}, 16, v{10+2*i}")
I("buffer_store_dwordx4 v[20:23], v4, s[24:27], s34 offen")
I("s_branch K1_END")
L("K1_V")
I("v_lshrrev_b32 v1, 4, v0")
I("v_and_b32 v2, 15, v0")
I("s_sub_u32 s29, s2, 128")
I("s_lshl_b32 s29, s29, 5")
I("v_add_u32 v1, s29, v1")
I("v_lshlrev_b32 v3, 9, v1")
I("v_lshl_add_u32 v3, v2, 5, v3")
I("v_lshrrev_b32 v4, 8, v1")
I("v_lshlrev_b32 v4, 9, v4")
I("v_lshl_add_u32 v4, v2, 5, v4")
I("s_waitcnt lgkmcnt(0)")
srd(16, 8, 4 * 256 * 256 * 2)
srd(20, 10, 2048)
srd(28, 12, 2048)
srd(24, 14, WS_END)
I("buffer_load_dwordx4 v[8:11], v3, s[16:19], 0 offen")
I("buffer_load_dwordx4 v[12:15], v3, s[16:19], 0 offen offset:16")
I("buffer_load_dwordx4 v[16:19], v4, s[20:23], 0 offen")
I("buffer_load_dwordx4 v[20:23], v4, s[20:23], 0 offen offset:16")
I("buffer_load_dwordx4 v[24:27], v4, s[28:31], 0 offen")
I("buffer_load_dwordx4 v[28:31], v4, s[28:31], 0 offen offset:16")
I("v_mov_b32 v32, 0")
I("v_mov_b32 v33, 0")
I("s_waitcnt vmcnt(0)")
for i in range(8):
    I(f"v_lshlrev_b32 v34, 16, v{8+i}")
    I(f"v_and_b32 v35, 0xffff0000, v{8+i}")
    I(f"v_lshlrev_b32 v36, 16, v{16+i}")
    I(f"v_and_b32 v37, 0xffff0000, v{16+i}")
    I(f"v_lshlrev_b32 v38, 16, v{24+i}")
    I(f"v_and_b32 v39, 0xffff0000, v{24+i}")
    I("v_fmac_f32 v32, v34, v36")
    I("v_fmac_f32 v33, v34, v38")
    I("v_fmac_f32 v32, v35, v37")
    I("v_fmac_f32 v33, v35, v39")
for mod in ["quad_perm:[1,0,3,2]", "quad_perm:[2,3,0,1]", "row_half_mirror", "row_mirror"]:
    I("s_nop 1")
    I(f"v_add_f32_dpp v32, v32, v32 {mod} row_mask:0xf bank_mask:0xf")
    I(f"v_add_f32_dpp v33, v33, v33 {mod} row_mask:0xf bank_mask:0xf")
I("v_cmp_eq_u32 vcc, 0, v2")
I("s_nop 1")
I("v_cndmask_b32 v32, v33, v32, vcc")
I("v_mul_f32 v32, 0x3fb8aa3b, v32")
I("v_cvt_pk_bf16_f32 v32, v32, v32")
I("v_lshlrev_b32 v5, 1, v1")
I("v_lshl_add_u32 v5, v2, 11, v5")
I(f"v_add_u32 v5, {VT_OFF}, v5")
I("v_cmp_gt_u32 vcc, 2, v2")
I("s_and_saveexec_b64 s[34:35], vcc")
I("s_cbranch_execz K1_END")
I("buffer_store_short v32, v5, s[24:27], 0 offen")
I("s_branch K1_END")
L("K1_PF")
I("s_load_dwordx2 s[4:5], s[0:1], 0")
I("v_lshlrev_b32 v1, 4, v0")
I("s_sub_u32 s29, s2, 160")
I("s_mul_i32 s29, s29, 40960")
I("s_waitcnt lgkmcnt(0)")
srd(16, 4, N * 512)
for i in range(5):
    I(f"buffer_load_dwordx4 v[{4+4*(i%8)}:{7+4*(i%8)}], v1, s[16:19], s29 offen")
    I("s_add_u32 s29, s29, 8192")
I("s_waitcnt vmcnt(0)")
L("K1_END")
I("s_endpgm")

KN = "standalone__graph_attention_gat__graph_kernel"
E(f".globl {KN}")
E(".p2align 8")
E(f".type {KN},@function")

class Alloc:
    def __init__(self, start, limit):
        self.n = start
        self.limit = limit
    def __call__(self, cnt, align=1):
        self.n = (self.n + align - 1) // align * align
        r = self.n
        self.n += cnt
        assert self.n <= self.limit, ("reg overflow", self.n)
        return r

va = Alloc(1, 256)
vC16 = va(1); vG = va(1); vLane = va(1)
vAS0 = va(1); vAT0 = va(1); vAS = va(1); vAT = va(1); vAR0 = va(1); vAD0 = va(1); vLoff = va(1)
vKEY = va(1); vSD1 = va(1); vWoff = va(1)
vT2 = va(1); vT3 = va(1)
vT0 = va(2, 2); vT1 = vT0 + 1
vP = va(2, 2)
vONE = va(2, 2)
vSDq = va(4, 4)
vDEN = va(4, 4)
vACC = va(64, 4)
vH0 = va(32, 4)
vVS = va(32, 4)
vPOOL = va(64, 4)
vDA = va(8, 4)
vREC = va(4, 4)
vS = va(4, 4)
vU = va(4, 4)
NV = va.n

sX = 16; sWS = 20; sOUT = 24; sSRC = 28; sDST = 32
s_wv = 36; s_lb = 37; s_n0 = 38; s_n1 = 39
s_pl = 41; s_prem = 42; s_psub = 43; s_il = 44; s_irem = 45
s_buf = 47; s_bufx = 46; s_ahead = 48; s_mode = 49; s_mask = 50; s_tmp = 51; s_tmp2 = 52
s_node0 = 53; s_nn = 54; s_keyhi = 55; s_cnt = 56; s_base = 57; s_tail = 58
s_first = 60; s_inv = 62; s_tmp3 = 63
sM = 64
sMA = 80
sMB = 14
s_wo = 82
s_st = 83

def stamp(i):
    if STAMPS:
        I("s_memtime s[98:99]")
        I("s_waitcnt lgkmcnt(0)")
        I(f"s_mov_b32 s{s_st+i}, s98")
def v4(r): return f"v[{r}:{r+3}]"

L(KN)
I(f"s_cmp_ge_u32 s2, {NT}")
I("s_cbranch_scc1 K3_END")
stamp(0)
if STAMPS:
    I("s_memrealtime s[98:99]")
    I("s_waitcnt lgkmcnt(0)")
    I(f"s_mov_b32 s{s_st+14}, s98")
I("s_load_dwordx2 s[12:13], s[0:1], 64")
I("s_load_dwordx4 s[4:7], s[0:1], 0")
I("s_load_dwordx2 s[8:9], s[0:1], 16")
I("s_load_dwordx2 s[10:11], s[0:1], 48")
I(f"v_lshrrev_b32 v{vT0}, 6, v0")
I(f"v_and_b32 v{vLane}, 63, v0")
I(f"v_and_b32 v{vC16}, 15, v0")
I(f"v_readfirstlane_b32 s{s_wv}, v{vT0}")
I(f"v_bfe_u32 v{vG}, v0, 4, 2")
I(f"v_lshlrev_b32 v{vT1}, 4, v0")
I(f"s_mov_b32 s{s_inv}, {INV}")
for r in range(4):
    I(f"v_mov_b32 v{vSDq+r}, s{s_inv}")
for k in range(2):
    I(f"ds_write_b128 v{vT1}, {v4(vSDq)} offset:{L_LIST + k*8192}")
I(f"v_lshlrev_b32 v{vT2}, 2, v{vLane}")
I(f"v_mov_b32 v{vT0}, 0")
I(f"ds_write_b32 v{vT2}, v{vT0} offset:{L_CNT}")
vC = vDA
I(f"v_lshrrev_b32 v{vT0}, 3, v0")
I(f"v_mul_u32_u24 v{vT0}, {NT*128}, v{vT0}")
I(f"v_and_b32 v{vT2}, 7, v0")
I(f"v_lshl_add_u32 v{vT0}, v{vT2}, 4, v{vT0}")
I(f"s_lshl_b32 s{s_tmp}, s2, 7")
I(f"v_lshlrev_b32 v{vT2}, 3, v0")
I(f"s_mov_b32 s{s_cnt}, {VT_OFF}")
I("s_waitcnt lgkmcnt(0)")
srd(sWS, 12, WS_END)
I(f"buffer_load_dwordx4 {v4(vC)}, v{vT0}, s[{sWS}:{sWS+3}], s{s_tmp} offen")
I(f"buffer_load_dwordx2 v[{vS}:{vS+1}], v{vT2}, s[{sWS}:{sWS+3}], s{s_cnt} offen")
srd(sX, 4, N * 512)
def rows_load():
    I(f"s_mul_i32 s{s_node0}, s2, 40")
    I(f"s_mul_i32 s{s_tmp2}, s{s_wv}, 5")
    I(f"s_add_u32 s{s_node0}, s{s_node0}, s{s_tmp2}")
    I(f"s_lshl_b32 s{s_tmp2}, s{s_node0}, 9")
    I(f"v_min_u32 v{vT1}, 4, v{vC16}")
    I(f"v_lshlrev_b32 v{vT1}, 9, v{vT1}")
    I(f"v_lshl_add_u32 v{vT1}, v{vG}, 4, v{vT1}")
    for ks in range(8):
        I(f"buffer_load_dwordx4 {v4(vPOOL+4*ks)}, v{vT1}, s[{sX}:{sX+3}], s{s_tmp2} offen offset:{ks*64}")

I("s_barrier")
stamp(1)
rows_load()
I(f"s_mul_i32 s{s_buf}, s{s_wv}, {WSTR}")
I(f"s_add_u32 s{s_buf}, s{s_buf}, {L_STG}")
I(f"s_add_u32 s{s_tmp}, s{s_buf}, {BUFB}")
I(f"s_xor_b32 s{s_bufx}, s{s_buf}, s{s_tmp}")
I(f"v_and_b32 v{vT0}, 7, v{vC16}")
I(f"v_mul_u32_u24 v{vAS0}, 1056, v{vT0}")
I(f"v_lshrrev_b32 v{vT0}, 3, v{vC16}")
I(f"v_lshl_add_u32 v{vAS0}, v{vT0}, 9, v{vAS0}")
I(f"v_lshl_add_u32 v{vAS0}, v{vG}, 4, v{vAS0}")
I(f"v_bfe_u32 v{vT0}, v{vLane}, 2, 3")
I(f"v_mul_u32_u24 v{vAT0}, 1056, v{vT0}")
I(f"v_lshrrev_b32 v{vT0}, 5, v{vLane}")
I(f"v_lshl_add_u32 v{vAT0}, v{vT0}, 9, v{vAT0}")
I(f"v_lshlrev_b32 v{vAD0}, 5, v{vT0}")
I(f"v_and_b32 v{vT0}, 3, v{vLane}")
I(f"v_lshl_add_u32 v{vAT0}, v{vT0}, 3, v{vAT0}")
I(f"v_lshlrev_b32 v{vAR0}, 4, v{vG}")
I(f"v_and_b32 v{vT0}, 31, v{vLane}")
I(f"v_lshlrev_b32 v{vLoff}, 4, v{vT0}")
I(f"v_lshlrev_b32 v{vWoff}, 4, v{vLane}")
I(f"s_lshl_b32 s{s_tmp}, s{s_wv}, 16")
I(f"s_add_u32 s{s_wo}, s{s_tmp}, {WP_OFF}")
I(f"s_mov_b32 s{s_mask}, 0xfffffe00")
for r in range(2):
    I(f"v_mov_b32 v{vONE+r}, 0x3f803f80")
I(f"s_lshl_b32 s{s_lb}, s{s_wv}, 11")
I(f"s_add_u32 s{s_lb}, s{s_lb}, {L_LIST}")
I(f"s_mov_b32 s{s_psub}, 0")
I(f"s_mov_b32 s{s_mode}, 0")
I(f"s_mov_b32 s{s_first}, 1")
I(f"v_cmp_gt_u32 s[{sMA}:{sMA+1}], 12, v{vC16}")
I(f"v_cmp_gt_u32 s[{sMB}:{sMB+1}], 8, v{vC16}")
I(f"v_mov_b32 v{vT0}, 1")
I(f"s_waitcnt vmcnt(9)")
stamp(2)
vA8 = vH0
vP8 = vH0 + 4
for k in range(4):
    I(f"v_cmp_ne_u32 s[{sM+2*k}:{sM+2*k+1}], s{s_inv}, v{vC+k}")
    I(f"v_bfe_u32 v{vA8+k}, v{vC+k}, 3, 5")
    I(f"v_lshlrev_b32 v{vA8+k}, 2, v{vA8+k}")
for k in range(4):
    I(f"s_mov_b64 exec, s[{sM+2*k}:{sM+2*k+1}]")
    I(f"ds_add_rtn_u32 v{vP8+k}, v{vA8+k}, v{vT0} offset:{L_CNT}")
I("s_mov_b64 exec, -1")
for k in range(4):
    I(f"v_min_u32 v{vA8+k}, 64, v{vA8+k}")
I("s_waitcnt vmcnt(8)")
I(f"ds_write_b64 v{vT2}, v[{vS}:{vS+1}] offset:{L_V}")
I("s_waitcnt lgkmcnt(1)")
for k in range(4):
    I(f"v_min_u32 v{vP8+k}, 255, v{vP8+k}")
    I(f"v_lshlrev_b32 v{vP8+k}, 2, v{vP8+k}")
    I(f"v_lshl_add_u32 v{vP8+k}, v{vA8+k}, 8, v{vP8+k}")
for k in range(4):
    I(f"s_mov_b64 exec, s[{sM+2*k}:{sM+2*k+1}]")
    I(f"ds_write_b32 v{vP8+k}, v{vC+k} offset:{L_LIST}")
I("s_mov_b64 exec, -1")
I(f"v_and_b32 v{vT1}, 31, v{vLane}")
I(f"v_lshlrev_b32 v{vT3}, 2, v{vT1}")
I(f"v_mov_b32 v{vT2}, 256")
I(f"v_cmp_eq_u32 vcc, 30, v{vT1}")
I(f"v_cmp_gt_u32 s[{sM}:{sM+1}], 16, v{vT1}")
I(f"s_lshl_b32 s{s_tmp}, s{s_wv}, 1")
I(f"v_cndmask_b32 v{vT2}, v{vT2}, 0, vcc")
I(f"s_or_b64 s[{sM}:{sM+1}], s[{sM}:{sM+1}], vcc")
I(f"s_add_u32 s{s_tmp2}, s{s_tmp}, 1")
I(f"v_add_u32 v{vT1}, s{s_lb}, v{vAD0}")
I("s_waitcnt lgkmcnt(0)")
I("s_barrier")
stamp(3)
I(f"ds_read_b32 v{vT0}, v{vT3} offset:{L_CNT}")
for q in range(2):
    I(f"ds_read_b128 {v4(vDA+4*q)}, v{vT1} offset:{q*16}")
I("s_waitcnt lgkmcnt(2)")
I(f"v_cmp_gt_u32 vcc, v{vT0}, v{vT2}")
I(f"v_readlane_b32 s{s_n0}, v{vT0}, s{s_tmp}")
I(f"v_readlane_b32 s{s_n1}, v{vT0}, s{s_tmp2}")
I(f"s_and_b64 vcc, vcc, s[{sM}:{sM+1}]")
I("s_cbranch_vccnz K3_SLOW")
for s in (s_n0, s_n1):
    I(f"s_add_u32 s{s}, s{s}, 15")
    I(f"s_lshr_b32 s{s}, s{s}, 4")
    I(f"s_max_u32 s{s}, s{s}, 1")
I(f"s_mov_b32 s{s_pl}, s{s_lb}")
I(f"s_mov_b32 s{s_prem}, s{s_n0}")
I(f"s_mov_b32 s{s_il}, s{s_lb}")
I(f"s_add_u32 s{s_irem}, s{s_n0}, s{s_n1}")

_uid = [0]
def uid(p):
    _uid[0] += 1
    return f"{p}_{_uid[0]}"

def read_da(s_list):
    I(f"v_add_u32 v{vT1}, s{s_list}, v{vAD0}")
    for q in range(2):
        I(f"ds_read_b128 {v4(vDA+4*q)}, v{vT1} offset:{q*16}")

def issue(sb):
    I(f"s_mov_b32 m0, s{sb}")
    for i in range(8):
        I(f"v_and_or_b32 v{vDA+i}, v{vDA+i}, s{s_mask}, v{vLoff}")
        I(f"buffer_load_dwordx4 v{vDA+i}, s[{sX}:{sX+3}], 0 offen lds")
        if i < 7:
            I("s_add_u32 m0, m0, 1056")

def advance_issue():
    I(f"s_add_u32 s{s_il}, s{s_il}, 64")
    I(f"s_sub_u32 s{s_irem}, s{s_irem}, 1")
    I(f"s_add_u32 s{s_tmp}, s{s_lb}, 1024")
    I(f"s_cmp_eq_u32 s{s_irem}, s{s_n1}")
    I(f"s_cselect_b32 s{s_il}, s{s_tmp}, s{s_il}")

vTR = vPOOL + 32
def proc1a(s_list_next):
    I(f"v_add_u32 v{vAS}, s{s_buf}, v{vAS0}")
    I(f"v_add_u32 v{vAT}, s{s_buf}, v{vAT0}")
    I(f"v_add_u32 v{vT0}, s{s_pl}, v{vAR0}")
    for ks in range(8):
        I(f"ds_read_b128 {v4(vPOOL+4*ks)}, v{vAS} offset:{ks*64}")
    I(f"ds_read_b128 {v4(vREC)}, v{vT0}")
    nlater = 1
    if s_list_next is not None:
        read_da(s_list_next)
        nlater += 2
    for j in range(16):
        I(f"ds_read_b64_tr_b16 v[{vTR+2*j}:{vTR+2*j+1}], v{vAT} offset:{j*32}")
    I("s_waitcnt lgkmcnt(15)")
    for ks in range(8):
        c = v4(vSDq) if ks == 0 else v4(vS)
        I(f"v_mfma_f32_16x16x32_bf16 {v4(vS)}, {v4(vPOOL+4*ks)}, {v4(vVS+4*ks)}, {c}")
    for k in range(4):
        I(f"v_cmp_eq_u32_sdwa s[{sM+2*k}:{sM+2*k+1}], v{vREC+k}, v{vKEY} src0_sel:BYTE_0 src1_sel:DWORD")
    I("s_waitcnt lgkmcnt(0)")

def v2(r): return f"v[{r}:{r+1}]"
def pbuild_list():
    l = []
    for k in range(4):
        l.append(f"v_mul_f32 v{vU+k}, 0x3e4ccccd, v{vS+k}")
    for k in range(4):
        l.append(f"v_max_f32 v{vU+k}, v{vS+k}, v{vU+k}")
    for k in range(4):
        l.append(f"v_exp_f32 v{vU+k}, v{vU+k}")
    for k in range(4):
        l.append(f"v_cndmask_b32 v{vU+k}, 0, v{vU+k}, s[{sM+2*k}:{sM+2*k+1}]")
    for k in range(2):
        l.append(f"v_cvt_pk_bf16_f32 v{vP+k}, v{vU+2*k}, v{vU+2*k+1}")
    l.append("s_nop 1")
    return l

def agg_list(first):
    l = []
    c = "0" if first else v4(vDEN)
    l.append(f"v_mfma_f32_16x16x16_bf16 {v4(vDEN)}, {v2(vONE)}, {v2(vP)}, {c}")
    for j in range(16):
        c = "0" if first else v4(vACC+4*j)
        l.append(f"v_mfma_f32_16x16x16_bf16 {v4(vACC+4*j)}, {v2(vTR+2*j)}, {v2(vP)}, {c}")
    return l

def dma_triplet(i, sb):
    t = []
    t.append(f"s_mov_b32 m0, s{sb}" if i == 0 else "s_add_u32 m0, m0, 1056")
    t.append(f"v_and_or_b32 v{vDA+i}, v{vDA+i}, s{s_mask}, v{vLoff}")
    t.append(f"buffer_load_dwordx4 v{vDA+i}, s[{sX}:{sX+3}], 0 offen lds")
    return t

def body(first, with_dma):
    l = pbuild_list() + agg_list(first)
    if with_dma:
        pos = [0, 6, 12, 19, 22, 25, 28, 31]
        out = []
        k = 0
        for idx, ins in enumerate(l):
            if k < 8 and idx == pos[k]:
                out += dma_triplet(k, s_buf)
                k += 1
            out.append(ins)
        assert k == 8
        l = out
    else:
        l = ["s_nop 3"] + l
    for ins in l:
        I(ins)

def proc_tail(allow_dma):
    u = uid("PT")
    if allow_dma:
        I(f"s_cmp_eq_u32 s{s_irem}, 0")
        I(f"s_cbranch_scc1 {u}_N")
        I(f"s_cmp_eq_u32 s{s_first}, 1")
        I(f"s_cbranch_scc1 {u}_DF")
        body(False, True)
        I(f"s_branch {u}_A")
        L(f"{u}_DF")
        body(True, True)
        L(f"{u}_A")
        advance_issue()
        I(f"s_add_u32 s{s_ahead}, s{s_ahead}, 1")
        I(f"s_branch {u}_E")
        L(f"{u}_N")
    I(f"s_cmp_eq_u32 s{s_first}, 1")
    I(f"s_cbranch_scc1 {u}_NF")
    body(False, False)
    I(f"s_branch {u}_E")
    L(f"{u}_NF")
    body(True, False)
    L(f"{u}_E")
    I(f"s_mov_b32 s{s_first}, 0")

def sdst(with_c1):
    l = []
    A = l.append
    A(f"v_and_b32 v{vT2}, 3, v{vC16}")
    A(f"v_lshlrev_b32 v{vT3}, 9, v{vT2}")
    A(f"v_lshl_add_u32 v{vT3}, v{vG}, 4, v{vT3}")
    for ks in range(8):
        A(f"ds_read_b128 {v4(vPOOL+32+4*ks)}, v{vT3} offset:{L_V+2048+ks*64}")
    for ks in range(8):
        A(f"ds_read_b128 {v4(vVS+4*ks)}, v{vT3} offset:{L_V+ks*64}")
    A("D")
    A(f"s_lshl_b32 s{s_tmp}, s{s_wv}, 8")
    A(f"v_lshlrev_b32 v{vT2}, 6, v{vT2}")
    A(f"v_add_u32 v{vT2}, s{s_tmp}, v{vT2}")
    A(f"v_lshl_add_u32 v{vT3}, v{vG}, 4, v{vT2}")
    A("D")
    A(f"v_lshrrev_b32 v{vKEY}, 2, v{vC16}")
    A(f"v_lshl_add_u32 v{vT2}, v{vKEY}, 2, v{vT2}")
    A(f"v_cmp_gt_u32 s[{sM}:{sM+1}], 4, v{vC16}")
    A(f"s_lshl_b32 s{s_tmp}, s{s_wv}, 4")
    A(f"v_add_u32 v{vKEY}, s{s_tmp}, v{vKEY}")
    A("D")
    A("W")
    for ks in range(8):
        c = "0" if ks == 0 else v4(vS)
        A(f"v_mfma_f32_16x16x32_bf16 {v4(vS)}, {v4(vPOOL+4*ks)}, {v4(vPOOL+32+4*ks)}, {c}")
        if ks % 2 == 1:
            A("D")
    A("D")
    A("s_nop 7")
    A(f"s_mov_b64 exec, s[{sM}:{sM+1}]")
    A(f"ds_write_b128 v{vT3}, {v4(vS)} offset:{L_SD}")
    A("s_mov_b64 exec, -1")
    A(f"ds_read_b32 v{vSDq}, v{vT2} offset:{L_SD}")
    A(f"ds_read_b32 v{vSD1}, v{vT2} offset:{L_SD+12}")
    A("s_waitcnt lgkmcnt(0)")
    for r in range(1, 4):
        A(f"v_mov_b32 v{vSDq+r}, v{vSDq}")
    k = 0
    for ins in l:
        if ins == "D":
            if with_c1:
                for t in dma_triplet(k, s_tmp2):
                    I(t)
                k += 1
        elif ins == "W":
            if with_c1:
                I(f"s_waitcnt vmcnt({8 + k}) lgkmcnt(8)")
            else:
                I("s_waitcnt lgkmcnt(8)")
        else:
            I(ins)
    assert (not with_c1) or k == 8

I("s_waitcnt lgkmcnt(0)")
issue(s_buf)
advance_issue()
read_da(s_il)
I(f"s_xor_b32 s{s_tmp2}, s{s_buf}, s{s_bufx}")
I("s_waitcnt lgkmcnt(0)")
sdst(True)
advance_issue()
I(f"s_mov_b32 s{s_ahead}, 2")
stamp(4)
stamp(5)

L("K3_LOOP")
I(f"s_cmp_ge_u32 s{s_ahead}, 2")
I("s_cbranch_scc1 K3_W8")
I("s_waitcnt vmcnt(0)")
L("K3_W8")
I("s_waitcnt vmcnt(8)")
proc1a(s_il)
proc_tail(True)
I(f"s_sub_u32 s{s_ahead}, s{s_ahead}, 1")
I(f"s_xor_b32 s{s_buf}, s{s_buf}, s{s_bufx}")
I(f"s_add_u32 s{s_pl}, s{s_pl}, 64")
I(f"s_sub_u32 s{s_prem}, s{s_prem}, 1")
I(f"s_cmp_lg_u32 s{s_prem}, 0")
I("s_cbranch_scc1 K3_LOOP")
L("K3_FIN")
I(f"s_cmp_eq_u32 s{s_psub}, 1")
I("s_cbranch_scc1 K3_F1")

NRING = 15
def wslot(slot):
    if slot < 8:
        return vPOOL + 8*slot
    if slot < 12:
        return vVS + 8*(slot - 8)
    return vACC + 36 + 8*(slot - 12)
def wload(ks, slot):
    if ks % 2 == 0:
        I(f"s_add_u32 s{s_tmp3}, s{s_wo}, {ks*2048}")
    for j in range(2):
        I(f"buffer_load_dwordx4 {v4(wslot(slot) + 4*j)}, v{vWoff}, s[{sWS}:{sWS+3}], s{s_tmp3} offen offset:{(ks%2)*2048 + j*1024}")

def finalize(sub):
    I(f"v_add_f32 v{vT0}, 0x3089705f, v{vDEN}")
    I(f"v_rcp_f32 v{vT0}, v{vT0}")
    I("s_nop 0")
    I(f"v_mul_f32 v{vT0}, 0.25, v{vT0}")
    if sub == 0:
        for r in range(4):
            I(f"v_mov_b32 v{vSDq+r}, v{vSD1}")
        I(f"v_add_u32 v{vKEY}, 8, v{vKEY}")
        I(f"s_mov_b32 s{s_psub}, 1")
        I(f"s_add_u32 s{s_pl}, s{s_lb}, 1024")
        I(f"s_mov_b32 s{s_prem}, s{s_n1}")
        I(f"s_mov_b32 s{s_first}, 1")
    else:
        I("s_nop 7")
    for j in range(16):
        d = vH0 + 2*j if sub == 0 else vACC + 4*j
        a = vACC + 4*j
        I(f"v_pk_mul_f32 v[{a}:{a+1}], v[{a}:{a+1}], v[{vT0}:{vT0+1}] op_sel_hi:[1,0]")
        I(f"v_pk_mul_f32 v[{a+2}:{a+3}], v[{a+2}:{a+3}], v[{vT0}:{vT0+1}] op_sel_hi:[1,0]")
        I(f"v_cvt_pk_bf16_f32 v{d}, v{a}, v{a+1}")
        I(f"v_cvt_pk_bf16_f32 v{d+1}, v{a+2}, v{a+3}")
    if sub == 0:
        I(f"s_cmp_eq_u32 s{s_mode}, 0")
        I("s_cbranch_scc1 K3_LOOP")
        I("s_branch K3_SLOW_SUB")

L("K3_F0")
stamp(6)
finalize(0)
L("K3_F1")
stamp(8)
for ks in range(12):
    wload(ks, ks)
finalize(1)
I(f"v_lshrrev_b32 v{vT0}, 2, v{vC16}")
I(f"v_mul_u32_u24 v{vT1}, {AGG_STRIDE}, v{vT0}")
I(f"s_mul_i32 s{s_tmp}, s{s_wv}, {WSTR}")
I(f"s_add_u32 s{s_tmp}, s{s_tmp}, {L_STG}")
I(f"v_and_b32 v{vT2}, 3, v{vC16}")
I(f"v_lshl_add_u32 v{vT1}, v{vT2}, 3, v{vT1}")
I(f"v_lshl_add_u32 v{vT1}, v{vG}, 5, v{vT1}")
I(f"v_add_u32 v{vT1}, s{s_tmp}, v{vT1}")
stamp(9)
I(f"s_mov_b64 exec, s[{sMA}:{sMA+1}]")
for j in range(16):
    I(f"ds_write_b64 v{vT1}, v[{vH0+2*j}:{vH0+2*j+1}] offset:{j*128}")
I(f"s_mov_b64 exec, s[{sMB}:{sMB+1}]")
for j in range(16):
    I(f"ds_write_b64 v{vT1}, v[{vACC+4*j}:{vACC+4*j+1}] offset:{3*AGG_STRIDE+j*128}")
I("s_mov_b64 exec, -1")
vBA = [vAS, vAT, vAS0]
for G in range(3):
    I(f"v_add_u32 v{vT0}, {16*G}, v{vC16}")
    if G == 2:
        I(f"v_min_u32 v{vT0}, 39, v{vT0}")
    I(f"v_mul_u32_u24 v{vT2}, 13, v{vT0}")
    I(f"v_lshrrev_b32 v{vT2}, 6, v{vT2}")
    I(f"v_mad_i32_i24 v{vT0}, v{vT2}, -5, v{vT0}")
    I(f"v_mul_u32_u24 v{vT2}, {WSTR}, v{vT2}")
    I(f"v_mul_u32_u24 v{vT0}, {AGG_STRIDE}, v{vT0}")
    I(f"v_add3_u32 v{vBA[G]}, v{vT0}, v{vT2}, v{vAR0}")
    I(f"v_add_u32 v{vBA[G]}, {L_STG}, v{vBA[G]}")
srd(sOUT, 10, N * 512)
I("s_waitcnt lgkmcnt(0)")
for ks in range(12, NRING):
    wload(ks, ks)
I("s_barrier")
stamp(10)
vO = vH0
vB = vACC
def bread(ks, slot):
    base = vB + 12*slot
    for G in range(3):
        I(f"ds_read_b128 {v4(base+4*G)}, v{vBA[G]} offset:{ks*64}")
NBS = 3
bread(0, 0)
bread(1, 1)
for ks in range(32):
    if ks + 2 < 32:
        bread(ks + 2, (ks + 2) % NBS)
    n_v = 2 * (min(32, ks + NRING) - ks - 1)
    n_l = 3 * (min(32, ks + 3) - ks - 1)
    I(f"s_waitcnt vmcnt({n_v}) lgkmcnt({n_l})")
    for j in range(2):
        w = v4(wslot(ks % NRING) + 4*j)
        for G in range(3):
            o = vO + 8*G + 4*j
            c = "0" if ks == 0 else v4(o)
            I(f"v_mfma_f32_16x16x32_bf16 {v4(o)}, {w}, {v4(vB + 12*(ks % NBS) + 4*G)}, {c}")
    if ks + NRING < 32:
        wload(ks + NRING, ks % NRING)
stamp(11)
I(f"s_mul_i32 s{s_tmp}, s2, {40*512}")
I(f"s_lshl_b32 s{s_tmp2}, s{s_wv}, 6")
I(f"s_add_u32 s{s_tmp}, s{s_tmp}, s{s_tmp2}")
I(f"v_lshlrev_b32 v{vT0}, 9, v{vC16}")
I(f"v_lshl_add_u32 v{vT0}, v{vG}, 4, v{vT0}")
I(f"v_add_u32 v{vT1}, {16*512}, v{vT0}")
I(f"v_add_u32 v{vT2}, {32*512}, v{vT0}")
I("s_nop 4")
for G in range(3):
    pk = vPOOL + 4*G
    for j in range(2):
        o = vO + 8*G + 4*j
        I(f"v_cvt_pk_bf16_f32 v{pk+2*j}, v{o}, v{o+1}")
        I(f"v_cvt_pk_bf16_f32 v{pk+2*j+1}, v{o+2}, v{o+3}")
    va_ = (vT0, vT1, vT2)[G]
    if G == 2:
        I(f"s_mov_b64 exec, s[{sMB}:{sMB+1}]")
    I(f"buffer_store_dwordx4 {v4(pk)}, v{va_}, s[{sOUT}:{sOUT+3}], s{s_tmp} offen")
if STAMPS:
    I("s_mov_b64 exec, -1")
    I("s_waitcnt vmcnt(0)")
    stamp(12)
    I("s_memrealtime s[98:99]")
    I("s_waitcnt lgkmcnt(0)")
    I(f"s_mov_b32 s{s_st+13}, s98")
    I(f"s_mov_b32 s{s_st+7}, s{s_st+6}")
    I(f"s_mov_b32 s{sWS+2}, 0x400000")
    I(f"s_lshl_b32 s{s_tmp}, s2, 3")
    I(f"s_add_u32 s{s_tmp}, s{s_tmp}, s{s_wv}")
    I(f"s_lshl_b32 s{s_tmp}, s{s_tmp}, 7")
    I(f"s_add_u32 s{s_tmp}, s{s_tmp}, 0x300000")
    I(f"v_mov_b32 v{vT0}, 0")
    for i in range(15):
        I(f"v_mov_b32 v{vT1}, s{s_st+i}")
        I(f"buffer_store_dword v{vT1}, v{vT0}, s[{sWS}:{sWS+3}], s{s_tmp} offen offset:{4*i}")
        I("s_nop 1")
I("s_branch K3_END")

L("K3_SLOW")
I(f"s_mov_b32 s{s_mode}, 1")
srd(sSRC, 6, NE * 4)
srd(sDST, 8, NE * 4)
I("s_waitcnt vmcnt(0) lgkmcnt(0)")
sdst(False)
L("K3_SLOW_SUB")
I(f"s_mul_i32 s{s_node0}, s2, 40")
I(f"s_mul_i32 s{s_tmp}, s{s_wv}, 5")
I(f"s_add_u32 s{s_node0}, s{s_node0}, s{s_tmp}")
I(f"s_mul_i32 s{s_tmp}, s{s_psub}, 3")
I(f"s_add_u32 s{s_node0}, s{s_node0}, s{s_tmp}")
I(f"s_sub_u32 s{s_nn}, 3, s{s_psub}")
I(f"s_lshl_b32 s{s_keyhi}, s{s_wv}, 1")
I(f"s_add_u32 s{s_keyhi}, s{s_keyhi}, s{s_psub}")
I(f"s_lshl_b32 s{s_keyhi}, s{s_keyhi}, 3")
I(f"s_mov_b32 s{s_cnt}, 0")
I(f"s_mov_b32 s{s_base}, 0")
I(f"s_mov_b32 s{s_tail}, 0")
I(f"s_mov_b32 s{s_pl}, s{s_lb}")
I(f"v_lshlrev_b32 v{vT2}, 2, v{vLane}")
L("K3_SLOW_SCAN")
I(f"buffer_load_dword v{vREC}, v{vT2}, s[{sDST}:{sDST+3}], s{s_base} offen")
I(f"buffer_load_dword v{vREC+1}, v{vT2}, s[{sSRC}:{sSRC+3}], s{s_base} offen")
I("s_waitcnt vmcnt(0)")
I(f"v_subrev_u32 v{vREC}, s{s_node0}, v{vREC}")
I(f"v_cmp_gt_u32 vcc, s{s_nn}, v{vREC}")
I("s_nop 1")
I("s_cbranch_vccz K3_SLOW_NEXT")
I(f"v_mbcnt_lo_u32_b32 v{vREC+2}, vcc_lo, 0")
I(f"v_mbcnt_hi_u32_b32 v{vREC+2}, vcc_hi, v{vREC+2}")
I(f"v_add_u32 v{vREC+2}, s{s_cnt}, v{vREC+2}")
I(f"v_lshlrev_b32 v{vREC+2}, 2, v{vREC+2}")
I(f"v_add_u32 v{vREC+2}, s{s_lb}, v{vREC+2}")
I(f"v_or_b32 v{vREC}, s{s_keyhi}, v{vREC}")
I(f"v_lshl_or_b32 v{vREC}, v{vREC+1}, 9, v{vREC}")
I(f"s_bcnt1_i32_b64 s{s_tmp}, vcc")
I("s_mov_b64 exec, vcc")
I(f"ds_write_b32 v{vREC+2}, v{vREC}")
I("s_mov_b64 exec, -1")
I(f"s_add_u32 s{s_cnt}, s{s_cnt}, s{s_tmp}")
L("K3_SLOW_CHK")
I(f"s_cmp_lt_u32 s{s_cnt}, 16")
I("s_cbranch_scc1 K3_SLOW_NEXT")
L("K3_SLOW_PROC")
read_da(s_lb)
I("s_waitcnt lgkmcnt(0)")
issue(s_buf)
I("s_waitcnt vmcnt(0)")
proc1a(None)
I("s_nop 7")
proc_tail(False)
I(f"s_cmp_eq_u32 s{s_tail}, 1")
I("s_cbranch_scc1 K3_FIN")
I(f"v_add_u32 v{vREC}, s{s_lb}, v{vT2}")
I(f"ds_read_b32 v{vREC+1}, v{vREC} offset:64")
I(f"ds_read_b32 v{vREC+2}, v{vREC} offset:320")
I("s_waitcnt lgkmcnt(0)")
I(f"ds_write_b32 v{vREC}, v{vREC+1}")
I(f"ds_write_b32 v{vREC}, v{vREC+2} offset:256")
I(f"s_sub_u32 s{s_cnt}, s{s_cnt}, 16")
I("s_branch K3_SLOW_CHK")
L("K3_SLOW_NEXT")
I(f"s_add_u32 s{s_base}, s{s_base}, 256")
I(f"s_cmp_lt_u32 s{s_base}, {NE*4}")
I("s_cbranch_scc1 K3_SLOW_SCAN")
I(f"v_add_u32 v{vREC}, s{s_lb}, v{vT2}")
I(f"v_mov_b32 v{vREC+1}, s{s_inv}")
I(f"v_cmp_le_u32 vcc, s{s_cnt}, v{vLane}")
I("s_mov_b64 exec, vcc")
I(f"ds_write_b32 v{vREC}, v{vREC+1}")
I("s_mov_b64 exec, -1")
I(f"s_mov_b32 s{s_tail}, 1")
I("s_branch K3_SLOW_PROC")
L("K3_END")
I("s_endpgm")

E('.section .rodata,"a"')
E(".p2align 6")
E(".amdhsa_kernel gat_prep_kernel")
E("  .amdhsa_next_free_vgpr 48")
E("  .amdhsa_next_free_sgpr 48")
E("  .amdhsa_accum_offset 48")
E("  .amdhsa_group_segment_fixed_size 0")
E("  .amdhsa_kernarg_size 72")
E("  .amdhsa_user_sgpr_count 2")
E("  .amdhsa_user_sgpr_kernarg_segment_ptr 1")
E("  .amdhsa_system_sgpr_workgroup_id_x 1")
E(".end_amdhsa_kernel")
E(".p2align 6")
E(f".amdhsa_kernel {KN}")
E("  .amdhsa_next_free_vgpr 256")
E("  .amdhsa_next_free_sgpr 102")
E("  .amdhsa_accum_offset 256")
E("  .amdhsa_group_segment_fixed_size 0")
E("  .amdhsa_kernarg_size 72")
E("  .amdhsa_user_sgpr_count 2")
E("  .amdhsa_user_sgpr_kernarg_segment_ptr 1")
E("  .amdhsa_system_sgpr_workgroup_id_x 1")
E(".end_amdhsa_kernel")

path = sys.argv[1] if len(sys.argv) > 1 else 'standalone__graph_attention_gat__graph.s'
open(path, 'w').write("\n".join(OUT) + "\n")
print("vgprs used:", NV, "lines:", len(OUT))
```

```python
import sys

OUT = []
def E(s=""):
    OUT.append(s)
def I(s):
    OUT.append("    " + s)
def L(s):
    OUT.append(s + ":")

STAMPS = len(sys.argv) > 2 and sys.argv[2] == 'stamps'

N = 10000
NE = 160000
NCHUNK = 64
EPC = 2500
NT = 250
CELLS_BYTES = NCHUNK * NT * 128
WP_OFF = 0x200000
VT_OFF = 0x280000
WS_END = 0x281000
MARK = 0x7FFFFFF7
INV = 0x7FFFFFFF

L_CNT = 0
L_SD = 256
L_V = 2304
L_LIST = 6400
L_STG = L_LIST + 17 * 1024
BUFB = 8448
WSTR = 17056
L_TOTAL = L_STG + 8 * WSTR
L_AGG = L_STG
AGG_STRIDE = 2080
assert L_TOTAL <= 163840 and L_STG % 16 == 0

HEADER = open('standalone__graph_attention_gat__graph.s.ref').read().split('\n')
for ln in HEADER:
    if ln.startswith('; @launch') or ln.startswith('; Override') or ln.startswith('; grid=ceil'):
        continue
    if not ln.startswith(';'):
        break
    E(ln)
E("; @launch kernel=gat_prep_kernel grid=(288,1,1) block=(512,1,1) lds=34816")
E("; @launch kernel=standalone__graph_attention_gat__graph_kernel grid=(250,1,1) block=(512,1,1) lds=%d" % L_TOTAL)
E('.amdgcn_target "amdgcn-amd-amdhsa--gfx950"')
E(".text")

def srd(d, b, nbytes):
    I(f"s_mov_b32 s{d}, s{b}")
    I(f"s_and_b32 s{d+1}, s{b+1}, 0xffff")
    I(f"s_mov_b32 s{d+2}, {nbytes}")
    I(f"s_mov_b32 s{d+3}, 0x00020000")

E(".globl gat_prep_kernel")
E(".p2align 8")
E(".type gat_prep_kernel,@function")
L("gat_prep_kernel")
I("s_cmp_ge_u32 s2, 288")
I("s_cbranch_scc1 K1_END")
I("s_cmp_ge_u32 s2, 160")
I("s_cbranch_scc1 K1_PF")
I("s_load_dwordx4 s[4:7], s[0:1], 8")
I("s_load_dwordx4 s[8:11], s[0:1], 24")
I("s_load_dwordx2 s[12:13], s[0:1], 40")
I("s_load_dwordx2 s[14:15], s[0:1], 64")
I("s_cmp_ge_u32 s2, 128")
I("s_cbranch_scc1 K1_V")
I("s_cmp_ge_u32 s2, 64")
I("s_cbranch_scc1 K1_REPACK")
I("v_lshlrev_b32 v1, 4, v0")
for r in range(2, 6):
    I(f"v_mov_b32 v{r}, {INV}")
for k in range(4):
    I(f"ds_write_b128 v1, v[2:5] offset:{k*8192}")
I("v_lshlrev_b32 v6, 2, v0")
I("v_mov_b32 v7, 0")
I("ds_write_b32 v6, v7 offset:32768")
I(f"s_mul_i32 s28, s2, {EPC*4}")
for j in range(1, 5):
    I(f"s_add_u32 s{28+j}, s28, {j*2000}")
I("v_cmp_gt_u32 vcc, 500, v0")
I("s_waitcnt lgkmcnt(0)")
srd(20, 6, NE * 4)
srd(16, 4, NE * 4)
I("s_and_saveexec_b64 s[34:35], vcc")
for j in range(5):
    I(f"buffer_load_dword v{10+j}, v6, s[20:23], s{28+j} offen")
for j in range(5):
    I(f"buffer_load_dword v{15+j}, v6, s[16:19], s{28+j} offen")
srd(24, 14, CELLS_BYTES)
I("v_mov_b32 v8, 1")
I(f"v_mov_b32 v9, {32768+2044}")
I("s_barrier")
I("s_waitcnt vmcnt(5)")
for j in range(5):
    vD = 10 + j
    vq, vr, vt, vb = 20, 21, 30 + j, 23
    I(f"v_mul_u32_u24 v{vq}, 52429, v{vD}")
    I(f"v_lshrrev_b32 v{vq}, 18, v{vq}")
    I(f"v_mad_i32_i24 v{vr}, v{vq}, -5, v{vD}")
    I(f"v_lshrrev_b32 v{vt}, 3, v{vq}")
    I(f"v_lshlrev_b32 v24, 2, v{vt}")
    I(f"ds_add_rtn_u32 v{35+j}, v24, v8 offset:32768")
    I(f"v_and_b32 v{vb}, 7, v{vq}")
    I(f"v_cmp_lt_u32 vcc, 2, v{vr}")
    I(f"v_lshlrev_b32 v{vb}, 4, v{vb}")
    I(f"v_add_u32 v22, 5, v{vr}")
    I(f"v_cndmask_b32 v{vr}, v{vr}, v22, vcc")
    I(f"v_add_u32 v{vD}, v{vb}, v{vr}")
I("s_waitcnt vmcnt(0)")
for j in range(5):
    I(f"v_lshl_or_b32 v{15+j}, v{15+j}, 9, v{10+j}")
I("s_waitcnt lgkmcnt(0)")
for j in range(5):
    vt, vrank = 30 + j, 35 + j
    I(f"v_cmp_gt_u32 vcc, 32, v{vrank}")
    I(f"v_lshlrev_b32 v{vt}, 7, v{vt}")
    I(f"v_lshl_add_u32 v{vt}, v{vrank}, 2, v{vt}")
    I(f"v_cndmask_b32 v{vt}, v9, v{vt}, vcc")
    I(f"ds_write_b32 v{vt}, v{15+j}")
I("s_mov_b64 exec, s[34:35]")
I("v_lshrrev_b32 v2, 3, v0")
I("v_lshlrev_b32 v2, 2, v2")
I("v_and_b32 v3, 7, v0")
I("v_cmp_eq_u32 s[36:37], 7, v3")
I(f"v_mov_b32 v4, {MARK}")
I(f"s_mul_i32 s28, s2, {NT*128}")
for k in range(3):
    I(f"v_add_u32 v{5+k}, {k*8192}, v1")
I(f"v_add_u32 v8, {3*8192}, v1")
I("s_waitcnt lgkmcnt(0)")
I("s_barrier")
for k in range(4):
    I(f"ds_read_b128 v[{10+4*k}:{13+4*k}], v1 offset:{k*8192}")
    I(f"ds_read_b32 v{30+k}, v2 offset:{32768+k*256}")
I("s_waitcnt lgkmcnt(0)")
for k in range(4):
    I(f"v_cmp_lt_u32 vcc, 32, v{30+k}")
    I("s_and_b64 vcc, vcc, s[36:37]")
    I("s_nop 1")
    I(f"v_cndmask_b32 v{13+4*k}, v{13+4*k}, v4, vcc")
for k in range(3):
    I(f"buffer_store_dwordx4 v[{10+4*k}:{13+4*k}], v{5+k}, s[24:27], s28 offen")
I("v_cmp_gt_u32 vcc, 464, v0")
I("s_and_saveexec_b64 s[34:35], vcc")
I("s_cbranch_execz K1_END")
I("buffer_store_dwordx4 v[22:25], v8, s[24:27], s28 offen")
I("s_branch K1_END")
L("K1_REPACK")
I("v_lshrrev_b32 v1, 6, v0")
I("v_and_b32 v2, 63, v0")
I("v_readfirstlane_b32 s28, v1")
I("s_sub_u32 s29, s2, 64")
I("s_lshl_b32 s29, s29, 3")
I("s_add_u32 s29, s29, s28")
I("s_lshr_b32 s30, s29, 4")
I("s_lshr_b32 s31, s29, 2")
I("s_and_b32 s31, s31, 3")
I("s_and_b32 s32, s29, 3")
I("s_and_b32 s33, s31, 1")
I("s_lshl_b32 s33, s33, 9")
I("s_lshl_b32 s34, s30, 3")
I("s_add_u32 s33, s33, s34")
I("s_lshr_b32 s34, s31, 1")
I("s_lshl_b32 s34, s34, 2")
I("s_add_u32 s33, s33, s34")
I("s_lshl_b32 s33, s33, 9")
I("s_lshl_b32 s34, s32, 7")
I("s_add_u32 s33, s33, s34")
I("s_add_u32 s36, s33, 131072")
I("v_lshlrev_b32 v3, 1, v2")
I("s_waitcnt lgkmcnt(0)")
srd(16, 8, 4 * 256 * 256 * 2)
for i in range(8):
    so = "s33" if i < 4 else "s36"
    I(f"buffer_load_ushort v{10+i}, v3, s[16:19], {so} offen offset:{(i&3)*512}")
srd(24, 14, WS_END)
I("s_lshl_b32 s34, s32, 6")
I("s_add_u32 s34, s34, s30")
I("s_lshl_b32 s34, s34, 11")
I("s_lshl_b32 s35, s31, 8")
I("s_add_u32 s34, s34, s35")
I(f"s_add_u32 s34, s34, {WP_OFF}")
I("v_lshrrev_b32 v4, 5, v2")
I("v_lshlrev_b32 v4, 16, v4")
I("v_bfe_u32 v5, v2, 2, 1")
I("v_lshl_or_b32 v4, v5, 10, v4")
I("v_bfe_u32 v5, v2, 3, 2")
I("v_lshl_or_b32 v4, v5, 6, v4")
I("v_and_b32 v5, 3, v2")
I("v_lshl_or_b32 v4, v5, 4, v4")
I("s_waitcnt vmcnt(0)")
for i in range(4):
    I(f"v_lshl_or_b32 v{20+i}, v{11+2*i}, 16, v{10+2*i}")
I("buffer_store_dwordx4 v[20:23], v4, s[24:27], s34 offen")
I("s_branch K1_END")
L("K1_V")
I("v_lshrrev_b32 v1, 4, v0")
I("v_and_b32 v2, 15, v0")
I("s_sub_u32 s29, s2, 128")
I("s_lshl_b32 s29, s29, 5")
I("v_add_u32 v1, s29, v1")
I("v_lshlrev_b32 v3, 9, v1")
I("v_lshl_add_u32 v3, v2, 5, v3")
I("v_lshrrev_b32 v4, 8, v1")
I("v_lshlrev_b32 v4, 9, v4")
I("v_lshl_add_u32 v4, v2, 5, v4")
I("s_waitcnt lgkmcnt(0)")
srd(16, 8, 4 * 256 * 256 * 2)
srd(20, 10, 2048)
srd(28, 12, 2048)
srd(24, 14, WS_END)
I("buffer_load_dwordx4 v[8:11], v3, s[16:19], 0 offen")
I("buffer_load_dwordx4 v[12:15], v3, s[16:19], 0 offen offset:16")
I("buffer_load_dwordx4 v[16:19], v4, s[20:23], 0 offen")
I("buffer_load_dwordx4 v[20:23], v4, s[20:23], 0 offen offset:16")
I("buffer_load_dwordx4 v[24:27], v4, s[28:31], 0 offen")
I("buffer_load_dwordx4 v[28:31], v4, s[28:31], 0 offen offset:16")
I("v_mov_b32 v32, 0")
I("v_mov_b32 v33, 0")
I("s_waitcnt vmcnt(0)")
for i in range(8):
    I(f"v_lshlrev_b32 v34, 16, v{8+i}")
    I(f"v_and_b32 v35, 0xffff0000, v{8+i}")
    I(f"v_lshlrev_b32 v36, 16, v{16+i}")
    I(f"v_and_b32 v37, 0xffff0000, v{16+i}")
    I(f"v_lshlrev_b32 v38, 16, v{24+i}")
    I(f"v_and_b32 v39, 0xffff0000, v{24+i}")
    I("v_fmac_f32 v32, v34, v36")
    I("v_fmac_f32 v33, v34, v38")
    I("v_fmac_f32 v32, v35, v37")
    I("v_fmac_f32 v33, v35, v39")
for mod in ["quad_perm:[1,0,3,2]", "quad_perm:[2,3,0,1]", "row_half_mirror", "row_mirror"]:
    I("s_nop 1")
    I(f"v_add_f32_dpp v32, v32, v32 {mod} row_mask:0xf bank_mask:0xf")
    I(f"v_add_f32_dpp v33, v33, v33 {mod} row_mask:0xf bank_mask:0xf")
I("v_cmp_eq_u32 vcc, 0, v2")
I("s_nop 1")
I("v_cndmask_b32 v32, v33, v32, vcc")
I("v_mul_f32 v32, 0x3fb8aa3b, v32")
I("v_cvt_pk_bf16_f32 v32, v32, v32")
I("v_lshlrev_b32 v5, 1, v1")
I("v_lshl_add_u32 v5, v2, 11, v5")
I(f"v_add_u32 v5, {VT_OFF}, v5")
I("v_cmp_gt_u32 vcc, 2, v2")
I("s_and_saveexec_b64 s[34:35], vcc")
I("s_cbranch_execz K1_END")
I("buffer_store_short v32, v5, s[24:27], 0 offen")
I("s_branch K1_END")
L("K1_PF")
I("s_load_dwordx2 s[4:5], s[0:1], 0")
I("s_load_dwordx2 s[6:7], s[0:1], 48")
I("v_lshlrev_b32 v1, 4, v0")
I("s_sub_u32 s29, s2, 160")
I("s_mov_b32 s30, s29")
I("s_mul_i32 s29, s29, 40960")
I("s_waitcnt lgkmcnt(0)")
srd(16, 4, N * 512)
for i in range(5):
    I(f"buffer_load_dwordx4 v[{4+4*(i%8)}:{7+4*(i%8)}], v1, s[16:19], s29 offen")
    I("s_add_u32 s29, s29, 8192")
srd(20, 6, N * 512)
I("s_mul_i32 s31, s30, 40960")
I("v_lshlrev_b32 v2, 6, v0")
I("v_and_b32 v2, 0x7000, v2")
I("buffer_load_dword v40, v2, s[20:23], s31 offen")
I("s_cmp_ge_u32 s30, 16")
I("s_cbranch_scc1 K1_PFW")
I("s_getpc_b64 s[32:33]")
L("K1_PCREF")
I("s_add_u32 s32, s32, standalone__graph_attention_gat__graph_kernel-K1_PCREF")
I("s_addc_u32 s33, s33, 0")
I("s_mov_b32 s34, K3_CODE_END-standalone__graph_attention_gat__graph_kernel")
I("s_mov_b32 s35, 0x00020000")
I("s_and_b32 s33, s33, 0xffff")
for i in range(3):
    I(f"buffer_load_dwordx4 v[24:27], v1, s[32:35], 0 offen" if i == 0 else f"buffer_load_dwordx4 v[24:27], v1, s[32:35], s{36+i} offen")
    if i < 2:
        I(f"s_mov_b32 s{37+i}, {8192*(i+1)}")
L("K1_PFW")
I("s_waitcnt vmcnt(0)")
L("K1_END")
I("s_endpgm")

KN = "standalone__graph_attention_gat__graph_kernel"
E(f".globl {KN}")
E(".p2align 8")
E(f".type {KN},@function")

class Alloc:
    def __init__(self, start, limit):
        self.n = start
        self.limit = limit
    def __call__(self, cnt, align=1):
        self.n = (self.n + align - 1) // align * align
        r = self.n
        self.n += cnt
        assert self.n <= self.limit, ("reg overflow", self.n)
        return r

va = Alloc(1, 256)
vC16 = va(1); vG = va(1); vLane = va(1)
vAS0 = va(1); vAT0 = va(1); vAS = va(1); vAT = va(1); vAR0 = va(1); vAD0 = va(1); vLoff = va(1)
vKEY = va(1); vSD1 = va(1); vWoff = va(1)
vT2 = va(1); vT3 = va(1)
vT0 = va(2, 2); vT1 = vT0 + 1
vP = va(2, 2)
vONE = va(2, 2)
vSDq = va(4, 4)
vDEN = va(4, 4)
vACC = va(64, 4)
vH0 = va(32, 4)
vVS = va(32, 4)
vPOOL = va(64, 4)
vDA = va(8, 4)
vREC = va(4, 4)
vS = va(4, 4)
vU = va(4, 4)
NV = va.n

sX = 16; sWS = 20; sOUT = 24; sSRC = 28; sDST = 32
s_wv = 36; s_lb = 37; s_n0 = 38; s_n1 = 39
s_pl = 41; s_prem = 42; s_psub = 43; s_il = 44; s_irem = 45
s_buf = 47; s_bufx = 46; s_ahead = 48; s_mode = 49; s_mask = 50; s_tmp = 51; s_tmp2 = 52
s_node0 = 53; s_nn = 54; s_keyhi = 55; s_cnt = 56; s_base = 57; s_tail = 58
s_first = 60; s_inv = 62; s_tmp3 = 63
sM = 64
sMA = 80
sMB = 14
s_wo = 82
s_st = 83

def stamp(i):
    if STAMPS:
        I("s_memtime s[98:99]")
        I("s_waitcnt lgkmcnt(0)")
        I(f"s_mov_b32 s{s_st+i}, s98")
def v4(r): return f"v[{r}:{r+3}]"

L(KN)
I(f"s_cmp_ge_u32 s2, {NT}")
I("s_cbranch_scc1 K3_END")
stamp(0)
if STAMPS:
    I("s_memrealtime s[98:99]")
    I("s_waitcnt lgkmcnt(0)")
    I(f"s_mov_b32 s{s_st+14}, s98")
I("s_load_dwordx2 s[12:13], s[0:1], 64")
I("s_load_dwordx4 s[4:7], s[0:1], 0")
I("s_load_dwordx2 s[8:9], s[0:1], 16")
I("s_load_dwordx2 s[10:11], s[0:1], 48")
I(f"v_lshrrev_b32 v{vT0}, 6, v0")
I(f"v_and_b32 v{vLane}, 63, v0")
I(f"v_and_b32 v{vC16}, 15, v0")
I(f"v_readfirstlane_b32 s{s_wv}, v{vT0}")
I(f"v_bfe_u32 v{vG}, v0, 4, 2")
I(f"v_lshlrev_b32 v{vT1}, 4, v0")
I(f"s_mov_b32 s{s_inv}, {INV}")
for r in range(4):
    I(f"v_mov_b32 v{vSDq+r}, s{s_inv}")
for k in range(2):
    I(f"ds_write_b128 v{vT1}, {v4(vSDq)} offset:{L_LIST + k*8192}")
I(f"v_lshlrev_b32 v{vT2}, 2, v{vLane}")
I(f"v_mov_b32 v{vT0}, 0")
I(f"ds_write_b32 v{vT2}, v{vT0} offset:{L_CNT}")
vC = vDA
I(f"v_lshrrev_b32 v{vT0}, 3, v0")
I(f"v_mul_u32_u24 v{vT0}, {NT*128}, v{vT0}")
I(f"v_and_b32 v{vT2}, 7, v0")
I(f"v_lshl_add_u32 v{vT0}, v{vT2}, 4, v{vT0}")
I(f"s_lshl_b32 s{s_tmp}, s2, 7")
I(f"v_lshlrev_b32 v{vT2}, 3, v0")
I(f"s_mov_b32 s{s_cnt}, {VT_OFF}")
I("s_waitcnt lgkmcnt(0)")
srd(sWS, 12, WS_END)
I(f"buffer_load_dwordx4 {v4(vC)}, v{vT0}, s[{sWS}:{sWS+3}], s{s_tmp} offen")
I(f"buffer_load_dwordx2 v[{vS}:{vS+1}], v{vT2}, s[{sWS}:{sWS+3}], s{s_cnt} offen")
srd(sX, 4, N * 512)
def rows_load():
    I(f"s_mul_i32 s{s_node0}, s2, 40")
    I(f"s_mul_i32 s{s_tmp2}, s{s_wv}, 5")
    I(f"s_add_u32 s{s_node0}, s{s_node0}, s{s_tmp2}")
    I(f"s_lshl_b32 s{s_tmp2}, s{s_node0}, 9")
    I(f"v_min_u32 v{vT1}, 4, v{vC16}")
    I(f"v_lshlrev_b32 v{vT1}, 9, v{vT1}")
    I(f"v_lshl_add_u32 v{vT1}, v{vG}, 4, v{vT1}")
    for ks in range(8):
        I(f"buffer_load_dwordx4 {v4(vPOOL+4*ks)}, v{vT1}, s[{sX}:{sX+3}], s{s_tmp2} offen offset:{ks*64}")

I("s_barrier")
stamp(1)
rows_load()
I(f"s_mul_i32 s{s_buf}, s{s_wv}, {WSTR}")
I(f"s_add_u32 s{s_buf}, s{s_buf}, {L_STG}")
I(f"s_add_u32 s{s_tmp}, s{s_buf}, {BUFB}")
I(f"s_xor_b32 s{s_bufx}, s{s_buf}, s{s_tmp}")
I(f"v_and_b32 v{vT0}, 7, v{vC16}")
I(f"v_mul_u32_u24 v{vAS0}, 1056, v{vT0}")
I(f"v_lshrrev_b32 v{vT0}, 3, v{vC16}")
I(f"v_lshl_add_u32 v{vAS0}, v{vT0}, 9, v{vAS0}")
I(f"v_lshl_add_u32 v{vAS0}, v{vG}, 4, v{vAS0}")
I(f"v_bfe_u32 v{vT0}, v{vLane}, 2, 3")
I(f"v_mul_u32_u24 v{vAT0}, 1056, v{vT0}")
I(f"v_lshrrev_b32 v{vT0}, 5, v{vLane}")
I(f"v_lshl_add_u32 v{vAT0}, v{vT0}, 9, v{vAT0}")
I(f"v_lshlrev_b32 v{vAD0}, 5, v{vT0}")
I(f"v_and_b32 v{vT0}, 3, v{vLane}")
I(f"v_lshl_add_u32 v{vAT0}, v{vT0}, 3, v{vAT0}")
I(f"v_lshlrev_b32 v{vAR0}, 4, v{vG}")
I(f"v_and_b32 v{vT0}, 31, v{vLane}")
I(f"v_lshlrev_b32 v{vLoff}, 4, v{vT0}")
I(f"v_lshlrev_b32 v{vWoff}, 4, v{vLane}")
I(f"s_lshl_b32 s{s_tmp}, s{s_wv}, 16")
I(f"s_add_u32 s{s_wo}, s{s_tmp}, {WP_OFF}")
I(f"s_mov_b32 s{s_mask}, 0xfffffe00")
for r in range(2):
    I(f"v_mov_b32 v{vONE+r}, 0x3f803f80")
I(f"s_lshl_b32 s{s_lb}, s{s_wv}, 11")
I(f"s_add_u32 s{s_lb}, s{s_lb}, {L_LIST}")
I(f"s_mov_b32 s{s_psub}, 0")
I(f"s_mov_b32 s{s_mode}, 0")
I(f"s_mov_b32 s{s_first}, 1")
I(f"v_cmp_gt_u32 s[{sMA}:{sMA+1}], 12, v{vC16}")
I(f"v_cmp_gt_u32 s[{sMB}:{sMB+1}], 8, v{vC16}")
I(f"v_mov_b32 v{vT0}, 1")
I(f"s_waitcnt vmcnt(9)")
stamp(2)
vA8 = vH0
vP8 = vH0 + 4
for k in range(4):
    I(f"v_cmp_ne_u32 s[{sM+2*k}:{sM+2*k+1}], s{s_inv}, v{vC+k}")
    I(f"v_bfe_u32 v{vA8+k}, v{vC+k}, 3, 5")
    I(f"v_lshlrev_b32 v{vA8+k}, 2, v{vA8+k}")
for k in range(4):
    I(f"s_mov_b64 exec, s[{sM+2*k}:{sM+2*k+1}]")
    I(f"ds_add_rtn_u32 v{vP8+k}, v{vA8+k}, v{vT0} offset:{L_CNT}")
I("s_mov_b64 exec, -1")
for k in range(4):
    I(f"v_min_u32 v{vA8+k}, 64, v{vA8+k}")
I("s_waitcnt vmcnt(8)")
I(f"ds_write_b64 v{vT2}, v[{vS}:{vS+1}] offset:{L_V}")
I("s_waitcnt lgkmcnt(1)")
for k in range(4):
    I(f"v_min_u32 v{vP8+k}, 255, v{vP8+k}")
    I(f"v_lshlrev_b32 v{vP8+k}, 2, v{vP8+k}")
    I(f"v_lshl_add_u32 v{vP8+k}, v{vA8+k}, 8, v{vP8+k}")
for k in range(4):
    I(f"s_mov_b64 exec, s[{sM+2*k}:{sM+2*k+1}]")
    I(f"ds_write_b32 v{vP8+k}, v{vC+k} offset:{L_LIST}")
I("s_mov_b64 exec, -1")
I(f"v_and_b32 v{vT1}, 31, v{vLane}")
I(f"v_lshlrev_b32 v{vT3}, 2, v{vT1}")
I(f"v_mov_b32 v{vT2}, 256")
I(f"v_cmp_eq_u32 vcc, 30, v{vT1}")
I(f"v_cmp_gt_u32 s[{sM}:{sM+1}], 16, v{vT1}")
I(f"s_lshl_b32 s{s_tmp}, s{s_wv}, 1")
I(f"v_cndmask_b32 v{vT2}, v{vT2}, 0, vcc")
I(f"s_or_b64 s[{sM}:{sM+1}], s[{sM}:{sM+1}], vcc")
I(f"s_add_u32 s{s_tmp2}, s{s_tmp}, 1")
I(f"v_add_u32 v{vT1}, s{s_lb}, v{vAD0}")
I("s_waitcnt lgkmcnt(0)")
I("s_barrier")
stamp(3)
I(f"ds_read_b32 v{vT0}, v{vT3} offset:{L_CNT}")
for q in range(2):
    I(f"ds_read_b128 {v4(vDA+4*q)}, v{vT1} offset:{q*16}")
I("s_waitcnt lgkmcnt(2)")
I(f"v_cmp_gt_u32 vcc, v{vT0}, v{vT2}")
I(f"v_readlane_b32 s{s_n0}, v{vT0}, s{s_tmp}")
I(f"v_readlane_b32 s{s_n1}, v{vT0}, s{s_tmp2}")
I(f"s_and_b64 vcc, vcc, s[{sM}:{sM+1}]")
I("s_cbranch_vccnz K3_SLOW")
for s in (s_n0, s_n1):
    I(f"s_add_u32 s{s}, s{s}, 15")
    I(f"s_lshr_b32 s{s}, s{s}, 4")
    I(f"s_max_u32 s{s}, s{s}, 1")
I(f"s_mov_b32 s{s_pl}, s{s_lb}")
I(f"s_mov_b32 s{s_prem}, s{s_n0}")
I(f"s_mov_b32 s{s_il}, s{s_lb}")
I(f"s_add_u32 s{s_irem}, s{s_n0}, s{s_n1}")

_uid = [0]
def uid(p):
    _uid[0] += 1
    return f"{p}_{_uid[0]}"

def read_da(s_list):
    I(f"v_add_u32 v{vT1}, s{s_list}, v{vAD0}")
    for q in range(2):
        I(f"ds_read_b128 {v4(vDA+4*q)}, v{vT1} offset:{q*16}")

def issue(sb):
    I(f"s_mov_b32 m0, s{sb}")
    for i in range(8):
        I(f"v_and_or_b32 v{vDA+i}, v{vDA+i}, s{s_mask}, v{vLoff}")
        I(f"buffer_load_dwordx4 v{vDA+i}, s[{sX}:{sX+3}], 0 offen lds")
        if i < 7:
            I("s_add_u32 m0, m0, 1056")

def advance_issue():
    I(f"s_add_u32 s{s_il}, s{s_il}, 64")
    I(f"s_sub_u32 s{s_irem}, s{s_irem}, 1")
    I(f"s_add_u32 s{s_tmp}, s{s_lb}, 1024")
    I(f"s_cmp_eq_u32 s{s_irem}, s{s_n1}")
    I(f"s_cselect_b32 s{s_il}, s{s_tmp}, s{s_il}")

vTR = vPOOL + 32
def proc1a(s_list_next):
    I(f"v_add_u32 v{vAS}, s{s_buf}, v{vAS0}")
    I(f"v_add_u32 v{vAT}, s{s_buf}, v{vAT0}")
    I(f"v_add_u32 v{vT0}, s{s_pl}, v{vAR0}")
    for ks in range(8):
        I(f"ds_read_b128 {v4(vPOOL+4*ks)}, v{vAS} offset:{ks*64}")
    I(f"ds_read_b128 {v4(vREC)}, v{vT0}")
    nlater = 1
    if s_list_next is not None:
        read_da(s_list_next)
        nlater += 2
    for j in range(16):
        I(f"ds_read_b64_tr_b16 v[{vTR+2*j}:{vTR+2*j+1}], v{vAT} offset:{j*32}")
    I("s_waitcnt lgkmcnt(15)")
    for ks in range(8):
        c = v4(vSDq) if ks == 0 else v4(vS)
        I(f"v_mfma_f32_16x16x32_bf16 {v4(vS)}, {v4(vPOOL+4*ks)}, {v4(vVS+4*ks)}, {c}")
    for k in range(4):
        I(f"v_cmp_eq_u32_sdwa s[{sM+2*k}:{sM+2*k+1}], v{vREC+k}, v{vKEY} src0_sel:BYTE_0 src1_sel:DWORD")
    I("s_waitcnt lgkmcnt(0)")

def v2(r): return f"v[{r}:{r+1}]"
def pbuild_list():
    l = []
    for k in range(4):
        l.append(f"v_mul_f32 v{vU+k}, 0x3e4ccccd, v{vS+k}")
    for k in range(4):
        l.append(f"v_max_f32 v{vU+k}, v{vS+k}, v{vU+k}")
    for k in range(4):
        l.append(f"v_exp_f32 v{vU+k}, v{vU+k}")
    for k in range(4):
        l.append(f"v_cndmask_b32 v{vU+k}, 0, v{vU+k}, s[{sM+2*k}:{sM+2*k+1}]")
    for k in range(2):
        l.append(f"v_cvt_pk_bf16_f32 v{vP+k}, v{vU+2*k}, v{vU+2*k+1}")
    l.append("s_nop 1")
    return l

def agg_list(first):
    l = []
    c = "0" if first else v4(vDEN)
    l.append(f"v_mfma_f32_16x16x16_bf16 {v4(vDEN)}, {v2(vONE)}, {v2(vP)}, {c}")
    for j in range(16):
        c = "0" if first else v4(vACC+4*j)
        l.append(f"v_mfma_f32_16x16x16_bf16 {v4(vACC+4*j)}, {v2(vTR+2*j)}, {v2(vP)}, {c}")
    return l

def dma_triplet(i, sb):
    t = []
    t.append(f"s_mov_b32 m0, s{sb}" if i == 0 else "s_add_u32 m0, m0, 1056")
    t.append(f"v_and_or_b32 v{vDA+i}, v{vDA+i}, s{s_mask}, v{vLoff}")
    t.append(f"buffer_load_dwordx4 v{vDA+i}, s[{sX}:{sX+3}], 0 offen lds")
    return t

def body(first, with_dma):
    l = pbuild_list() + agg_list(first)
    if with_dma:
        pos = [0, 6, 12, 19, 22, 25, 28, 31]
        out = []
        k = 0
        for idx, ins in enumerate(l):
            if k < 8 and idx == pos[k]:
                out += dma_triplet(k, s_buf)
                k += 1
            out.append(ins)
        assert k == 8
        l = out
    else:
        l = ["s_nop 3"] + l
    for ins in l:
        I(ins)

def proc_tail(allow_dma):
    u = uid("PT")
    if allow_dma:
        I(f"s_cmp_eq_u32 s{s_irem}, 0")
        I(f"s_cbranch_scc1 {u}_N")
        I(f"s_cmp_eq_u32 s{s_first}, 1")
        I(f"s_cbranch_scc1 {u}_DF")
        body(False, True)
        I(f"s_branch {u}_A")
        L(f"{u}_DF")
        body(True, True)
        L(f"{u}_A")
        advance_issue()
        I(f"s_add_u32 s{s_ahead}, s{s_ahead}, 1")
        I(f"s_branch {u}_E")
        L(f"{u}_N")
    I(f"s_cmp_eq_u32 s{s_first}, 1")
    I(f"s_cbranch_scc1 {u}_NF")
    body(False, False)
    I(f"s_branch {u}_E")
    L(f"{u}_NF")
    body(True, False)
    L(f"{u}_E")
    I(f"s_mov_b32 s{s_first}, 0")

def sdst(with_c1):
    l = []
    A = l.append
    A(f"v_and_b32 v{vT2}, 3, v{vC16}")
    A(f"v_lshlrev_b32 v{vT3}, 9, v{vT2}")
    A(f"v_lshl_add_u32 v{vT3}, v{vG}, 4, v{vT3}")
    for ks in range(8):
        A(f"ds_read_b128 {v4(vPOOL+32+4*ks)}, v{vT3} offset:{L_V+2048+ks*64}")
    for ks in range(8):
        A(f"ds_read_b128 {v4(vVS+4*ks)}, v{vT3} offset:{L_V+ks*64}")
    A("D")
    A(f"s_lshl_b32 s{s_tmp}, s{s_wv}, 8")
    A(f"v_lshlrev_b32 v{vT2}, 6, v{vT2}")
    A(f"v_add_u32 v{vT2}, s{s_tmp}, v{vT2}")
    A(f"v_lshl_add_u32 v{vT3}, v{vG}, 4, v{vT2}")
    A("D")
    A(f"v_lshrrev_b32 v{vKEY}, 2, v{vC16}")
    A(f"v_lshl_add_u32 v{vT2}, v{vKEY}, 2, v{vT2}")
    A(f"v_cmp_gt_u32 s[{sM}:{sM+1}], 4, v{vC16}")
    A(f"s_lshl_b32 s{s_tmp}, s{s_wv}, 4")
    A(f"v_add_u32 v{vKEY}, s{s_tmp}, v{vKEY}")
    A("D")
    A("W")
    for ks in range(8):
        c = "0" if ks == 0 else v4(vS)
        A(f"v_mfma_f32_16x16x32_bf16 {v4(vS)}, {v4(vPOOL+4*ks)}, {v4(vPOOL+32+4*ks)}, {c}")
        if ks % 2 == 1:
            A("D")
    A("D")
    A("s_nop 7")
    A(f"s_mov_b64 exec, s[{sM}:{sM+1}]")
    A(f"ds_write_b128 v{vT3}, {v4(vS)} offset:{L_SD}")
    A("s_mov_b64 exec, -1")
    A(f"ds_read_b32 v{vSDq}, v{vT2} offset:{L_SD}")
    A(f"ds_read_b32 v{vSD1}, v{vT2} offset:{L_SD+12}")
    A("s_waitcnt lgkmcnt(0)")
    for r in range(1, 4):
        A(f"v_mov_b32 v{vSDq+r}, v{vSDq}")
    k = 0
    for ins in l:
        if ins == "D":
            if with_c1:
                for t in dma_triplet(k, s_tmp2):
                    I(t)
                k += 1
        elif ins == "W":
            if with_c1:
                I(f"s_waitcnt vmcnt({8 + k}) lgkmcnt(8)")
            else:
                I("s_waitcnt lgkmcnt(8)")
        else:
            I(ins)
    assert (not with_c1) or k == 8

I("s_waitcnt lgkmcnt(0)")
issue(s_buf)
advance_issue()
read_da(s_il)
I(f"s_xor_b32 s{s_tmp2}, s{s_buf}, s{s_bufx}")
I("s_waitcnt lgkmcnt(0)")
sdst(True)
advance_issue()
I(f"s_mov_b32 s{s_ahead}, 2")
stamp(4)
stamp(5)

L("K3_LOOP")
I(f"s_cmp_ge_u32 s{s_ahead}, 2")
I("s_cbranch_scc1 K3_W8")
I("s_waitcnt vmcnt(0)")
L("K3_W8")
I("s_waitcnt vmcnt(8)")
proc1a(s_il)
proc_tail(True)
I(f"s_sub_u32 s{s_ahead}, s{s_ahead}, 1")
I(f"s_xor_b32 s{s_buf}, s{s_buf}, s{s_bufx}")
I(f"s_add_u32 s{s_pl}, s{s_pl}, 64")
I(f"s_sub_u32 s{s_prem}, s{s_prem}, 1")
I(f"s_cmp_lg_u32 s{s_prem}, 0")
I("s_cbranch_scc1 K3_LOOP")
L("K3_FIN")
I(f"s_cmp_eq_u32 s{s_psub}, 1")
I("s_cbranch_scc1 K3_F1")

NRING = 15
def wslot(slot):
    if slot < 8:
        return vPOOL + 8*slot
    if slot < 12:
        return vVS + 8*(slot - 8)
    return vACC + 36 + 8*(slot - 12)
def wload(ks, slot):
    if ks % 2 == 0:
        I(f"s_add_u32 s{s_tmp3}, s{s_wo}, {ks*2048}")
    for j in range(2):
        I(f"buffer_load_dwordx4 {v4(wslot(slot) + 4*j)}, v{vWoff}, s[{sWS}:{sWS+3}], s{s_tmp3} offen offset:{(ks%2)*2048 + j*1024}")

def finalize(sub):
    I(f"v_add_f32 v{vT0}, 0x3089705f, v{vDEN}")
    I(f"v_rcp_f32 v{vT0}, v{vT0}")
    I("s_nop 0")
    I(f"v_mul_f32 v{vT0}, 0.25, v{vT0}")
    if sub == 0:
        for r in range(4):
            I(f"v_mov_b32 v{vSDq+r}, v{vSD1}")
        I(f"v_add_u32 v{vKEY}, 8, v{vKEY}")
        I(f"s_mov_b32 s{s_psub}, 1")
        I(f"s_add_u32 s{s_pl}, s{s_lb}, 1024")
        I(f"s_mov_b32 s{s_prem}, s{s_n1}")
        I(f"s_mov_b32 s{s_first}, 1")
    else:
        I("s_nop 7")
    for j in range(16):
        d = vH0 + 2*j if sub == 0 else vACC + 4*j
        a = vACC + 4*j
        I(f"v_pk_mul_f32 v[{a}:{a+1}], v[{a}:{a+1}], v[{vT0}:{vT0+1}] op_sel_hi:[1,0]")
        I(f"v_pk_mul_f32 v[{a+2}:{a+3}], v[{a+2}:{a+3}], v[{vT0}:{vT0+1}] op_sel_hi:[1,0]")
        I(f"v_cvt_pk_bf16_f32 v{d}, v{a}, v{a+1}")
        I(f"v_cvt_pk_bf16_f32 v{d+1}, v{a+2}, v{a+3}")
    if sub == 0:
        I(f"s_cmp_eq_u32 s{s_mode}, 0")
        I("s_cbranch_scc1 K3_LOOP")
        I("s_branch K3_SLOW_SUB")

L("K3_F0")
stamp(6)
finalize(0)
L("K3_F1")
stamp(8)
for ks in range(12):
    wload(ks, ks)
finalize(1)
I(f"v_lshrrev_b32 v{vT0}, 2, v{vC16}")
I(f"v_mul_u32_u24 v{vT1}, {AGG_STRIDE}, v{vT0}")
I(f"s_mul_i32 s{s_tmp}, s{s_wv}, {WSTR}")
I(f"s_add_u32 s{s_tmp}, s{s_tmp}, {L_STG}")
I(f"v_and_b32 v{vT2}, 3, v{vC16}")
I(f"v_lshl_add_u32 v{vT1}, v{vT2}, 3, v{vT1}")
I(f"v_lshl_add_u32 v{vT1}, v{vG}, 5, v{vT1}")
I(f"v_add_u32 v{vT1}, s{s_tmp}, v{vT1}")
stamp(9)
I(f"s_mov_b64 exec, s[{sMA}:{sMA+1}]")
for j in range(16):
    I(f"ds_write_b64 v{vT1}, v[{vH0+2*j}:{vH0+2*j+1}] offset:{j*128}")
I(f"s_mov_b64 exec, s[{sMB}:{sMB+1}]")
for j in range(16):
    I(f"ds_write_b64 v{vT1}, v[{vACC+4*j}:{vACC+4*j+1}] offset:{3*AGG_STRIDE+j*128}")
I("s_mov_b64 exec, -1")
vBA = [vAS, vAT, vAS0]
for G in range(3):
    I(f"v_add_u32 v{vT0}, {16*G}, v{vC16}")
    if G == 2:
        I(f"v_min_u32 v{vT0}, 39, v{vT0}")
    I(f"v_mul_u32_u24 v{vT2}, 13, v{vT0}")
    I(f"v_lshrrev_b32 v{vT2}, 6, v{vT2}")
    I(f"v_mad_i32_i24 v{vT0}, v{vT2}, -5, v{vT0}")
    I(f"v_mul_u32_u24 v{vT2}, {WSTR}, v{vT2}")
    I(f"v_mul_u32_u24 v{vT0}, {AGG_STRIDE}, v{vT0}")
    I(f"v_add3_u32 v{vBA[G]}, v{vT0}, v{vT2}, v{vAR0}")
    I(f"v_add_u32 v{vBA[G]}, {L_STG}, v{vBA[G]}")
srd(sOUT, 10, N * 512)
I("s_waitcnt lgkmcnt(0)")
for ks in range(12, NRING):
    wload(ks, ks)
I("s_barrier")
stamp(10)
vO = vH0
vB = vACC
def bread(ks, slot):
    base = vB + 12*slot
    for G in range(3):
        I(f"ds_read_b128 {v4(base+4*G)}, v{vBA[G]} offset:{ks*64}")
NBS = 3
bread(0, 0)
bread(1, 1)
for ks in range(32):
    if ks + 2 < 32:
        bread(ks + 2, (ks + 2) % NBS)
    n_v = 2 * (min(32, ks + NRING) - ks - 1)
    n_l = 3 * (min(32, ks + 3) - ks - 1)
    I(f"s_waitcnt vmcnt({n_v}) lgkmcnt({n_l})")
    for j in range(2):
        w = v4(wslot(ks % NRING) + 4*j)
        for G in range(3):
            o = vO + 8*G + 4*j
            c = "0" if ks == 0 else v4(o)
            I(f"v_mfma_f32_16x16x32_bf16 {v4(o)}, {w}, {v4(vB + 12*(ks % NBS) + 4*G)}, {c}")
    if ks + NRING < 32:
        wload(ks + NRING, ks % NRING)
stamp(11)
I(f"s_mul_i32 s{s_tmp}, s2, {40*512}")
I(f"s_lshl_b32 s{s_tmp2}, s{s_wv}, 6")
I(f"s_add_u32 s{s_tmp}, s{s_tmp}, s{s_tmp2}")
I(f"v_lshlrev_b32 v{vT0}, 9, v{vC16}")
I(f"v_lshl_add_u32 v{vT0}, v{vG}, 4, v{vT0}")
I(f"v_add_u32 v{vT1}, {16*512}, v{vT0}")
I(f"v_add_u32 v{vT2}, {32*512}, v{vT0}")
I("s_nop 4")
for G in range(3):
    pk = vPOOL + 4*G
    for j in range(2):
        o = vO + 8*G + 4*j
        I(f"v_cvt_pk_bf16_f32 v{pk+2*j}, v{o}, v{o+1}")
        I(f"v_cvt_pk_bf16_f32 v{pk+2*j+1}, v{o+2}, v{o+3}")
    va_ = (vT0, vT1, vT2)[G]
    if G == 2:
        I(f"s_mov_b64 exec, s[{sMB}:{sMB+1}]")
    I(f"buffer_store_dwordx4 {v4(pk)}, v{va_}, s[{sOUT}:{sOUT+3}], s{s_tmp} offen")
if STAMPS:
    I("s_mov_b64 exec, -1")
    I("s_waitcnt vmcnt(0)")
    stamp(12)
    I("s_memrealtime s[98:99]")
    I("s_waitcnt lgkmcnt(0)")
    I(f"s_mov_b32 s{s_st+13}, s98")
    I(f"s_mov_b32 s{s_st+7}, s{s_st+6}")
    I(f"s_mov_b32 s{sWS+2}, 0x400000")
    I(f"s_lshl_b32 s{s_tmp}, s2, 3")
    I(f"s_add_u32 s{s_tmp}, s{s_tmp}, s{s_wv}")
    I(f"s_lshl_b32 s{s_tmp}, s{s_tmp}, 7")
    I(f"s_add_u32 s{s_tmp}, s{s_tmp}, 0x300000")
    I(f"v_mov_b32 v{vT0}, 0")
    for i in range(15):
        I(f"v_mov_b32 v{vT1}, s{s_st+i}")
        I(f"buffer_store_dword v{vT1}, v{vT0}, s[{sWS}:{sWS+3}], s{s_tmp} offen offset:{4*i}")
        I("s_nop 1")
I("s_branch K3_END")

L("K3_SLOW")
I(f"s_mov_b32 s{s_mode}, 1")
srd(sSRC, 6, NE * 4)
srd(sDST, 8, NE * 4)
I("s_waitcnt vmcnt(0) lgkmcnt(0)")
sdst(False)
L("K3_SLOW_SUB")
I(f"s_mul_i32 s{s_node0}, s2, 40")
I(f"s_mul_i32 s{s_tmp}, s{s_wv}, 5")
I(f"s_add_u32 s{s_node0}, s{s_node0}, s{s_tmp}")
I(f"s_mul_i32 s{s_tmp}, s{s_psub}, 3")
I(f"s_add_u32 s{s_node0}, s{s_node0}, s{s_tmp}")
I(f"s_sub_u32 s{s_nn}, 3, s{s_psub}")
I(f"s_lshl_b32 s{s_keyhi}, s{s_wv}, 1")
I(f"s_add_u32 s{s_keyhi}, s{s_keyhi}, s{s_psub}")
I(f"s_lshl_b32 s{s_keyhi}, s{s_keyhi}, 3")
I(f"s_mov_b32 s{s_cnt}, 0")
I(f"s_mov_b32 s{s_base}, 0")
I(f"s_mov_b32 s{s_tail}, 0")
I(f"s_mov_b32 s{s_pl}, s{s_lb}")
I(f"v_lshlrev_b32 v{vT2}, 2, v{vLane}")
L("K3_SLOW_SCAN")
I(f"buffer_load_dword v{vREC}, v{vT2}, s[{sDST}:{sDST+3}], s{s_base} offen")
I(f"buffer_load_dword v{vREC+1}, v{vT2}, s[{sSRC}:{sSRC+3}], s{s_base} offen")
I("s_waitcnt vmcnt(0)")
I(f"v_subrev_u32 v{vREC}, s{s_node0}, v{vREC}")
I(f"v_cmp_gt_u32 vcc, s{s_nn}, v{vREC}")
I("s_nop 1")
I("s_cbranch_vccz K3_SLOW_NEXT")
I(f"v_mbcnt_lo_u32_b32 v{vREC+2}, vcc_lo, 0")
I(f"v_mbcnt_hi_u32_b32 v{vREC+2}, vcc_hi, v{vREC+2}")
I(f"v_add_u32 v{vREC+2}, s{s_cnt}, v{vREC+2}")
I(f"v_lshlrev_b32 v{vREC+2}, 2, v{vREC+2}")
I(f"v_add_u32 v{vREC+2}, s{s_lb}, v{vREC+2}")
I(f"v_or_b32 v{vREC}, s{s_keyhi}, v{vREC}")
I(f"v_lshl_or_b32 v{vREC}, v{vREC+1}, 9, v{vREC}")
I(f"s_bcnt1_i32_b64 s{s_tmp}, vcc")
I("s_mov_b64 exec, vcc")
I(f"ds_write_b32 v{vREC+2}, v{vREC}")
I("s_mov_b64 exec, -1")
I(f"s_add_u32 s{s_cnt}, s{s_cnt}, s{s_tmp}")
L("K3_SLOW_CHK")
I(f"s_cmp_lt_u32 s{s_cnt}, 16")
I("s_cbranch_scc1 K3_SLOW_NEXT")
L("K3_SLOW_PROC")
read_da(s_lb)
I("s_waitcnt lgkmcnt(0)")
issue(s_buf)
I("s_waitcnt vmcnt(0)")
proc1a(None)
I("s_nop 7")
proc_tail(False)
I(f"s_cmp_eq_u32 s{s_tail}, 1")
I("s_cbranch_scc1 K3_FIN")
I(f"v_add_u32 v{vREC}, s{s_lb}, v{vT2}")
I(f"ds_read_b32 v{vREC+1}, v{vREC} offset:64")
I(f"ds_read_b32 v{vREC+2}, v{vREC} offset:320")
I("s_waitcnt lgkmcnt(0)")
I(f"ds_write_b32 v{vREC}, v{vREC+1}")
I(f"ds_write_b32 v{vREC}, v{vREC+2} offset:256")
I(f"s_sub_u32 s{s_cnt}, s{s_cnt}, 16")
I("s_branch K3_SLOW_CHK")
L("K3_SLOW_NEXT")
I(f"s_add_u32 s{s_base}, s{s_base}, 256")
I(f"s_cmp_lt_u32 s{s_base}, {NE*4}")
I("s_cbranch_scc1 K3_SLOW_SCAN")
I(f"v_add_u32 v{vREC}, s{s_lb}, v{vT2}")
I(f"v_mov_b32 v{vREC+1}, s{s_inv}")
I(f"v_cmp_le_u32 vcc, s{s_cnt}, v{vLane}")
I("s_mov_b64 exec, vcc")
I(f"ds_write_b32 v{vREC}, v{vREC+1}")
I("s_mov_b64 exec, -1")
I(f"s_mov_b32 s{s_tail}, 1")
I("s_branch K3_SLOW_PROC")
L("K3_END")
I("s_endpgm")
L("K3_CODE_END")

E('.section .rodata,"a"')
E(".p2align 6")
E(".amdhsa_kernel gat_prep_kernel")
E("  .amdhsa_next_free_vgpr 48")
E("  .amdhsa_next_free_sgpr 48")
E("  .amdhsa_accum_offset 48")
E("  .amdhsa_group_segment_fixed_size 0")
E("  .amdhsa_kernarg_size 72")
E("  .amdhsa_user_sgpr_count 2")
E("  .amdhsa_user_sgpr_kernarg_segment_ptr 1")
E("  .amdhsa_system_sgpr_workgroup_id_x 1")
E(".end_amdhsa_kernel")
E(".p2align 6")
E(f".amdhsa_kernel {KN}")
E("  .amdhsa_next_free_vgpr 256")
E("  .amdhsa_next_free_sgpr 102")
E("  .amdhsa_accum_offset 256")
E("  .amdhsa_group_segment_fixed_size 0")
E("  .amdhsa_kernarg_size 72")
E("  .amdhsa_user_sgpr_count 2")
E("  .amdhsa_user_sgpr_kernarg_segment_ptr 1")
E("  .amdhsa_system_sgpr_workgroup_id_x 1")
E(".end_amdhsa_kernel")

path = sys.argv[1] if len(sys.argv) > 1 else 'standalone__graph_attention_gat__graph.s'
open(path, 'w').write("\n".join(OUT) + "\n")
print("vgprs used:", NV, "lines:", len(OUT))
```
